```python
import torch

def _softmax(x, axis=-1):
    return torch.softmax(x, dim=axis)

def _gelu(x):
    return torch.nn.functional.gelu(x, approximate='tanh')

def _silu(x):
    return torch.nn.functional.silu(x)

def _sigmoid(x):
    return torch.sigmoid(x)

def _layernorm(x, axis=-1, eps=1e-05):
    m = x.mean(dim=axis, keepdim=True)
    v = x.var(dim=axis, keepdim=True, unbiased=False)
    return (x - m) / torch.sqrt(v + eps)

def _scatter_add(tgt, idx, src, axis=0):
    return tgt.clone().index_add_(axis, idx, src)

def _segment_sum(src, seg, n):
    out = torch.zeros((n,) + src.shape[1:], dtype=src.dtype)
    return out.index_add_(0, seg, src)

def _pad(x, pw):
    flat = tuple((v for pair in reversed(pw) for v in pair))
    return torch.nn.functional.pad(x, flat)
kernel_name = 'gated_mix__memory_aug_recurrent_mem_tr__moe_arch_mod__prompt'

def setup_inputs():

    _w = lambda a: (lambda t: t.to(torch.bfloat16) if t.is_floating_point() else t)(torch.as_tensor(a))

    def _A_setup():
        B, S, Dm = (1, 2048, 1024)
        H, Dh = (32, 128)
        M, seg = (8, 32)
        seg = min(seg, S)
        S = S // seg * seg
        return {'x': _w((lambda *s: torch.randn(*s, dtype=torch.bfloat16) * 0.05)(B, S, Dm)), 'mem0': _w((lambda *s: torch.randn(*s, dtype=torch.bfloat16) * 0.8)(B, M, Dm)), 'Wq': _w((lambda *s: torch.randn(*s, dtype=torch.bfloat16) * 3.2)(Dm, H, Dh) * Dm ** (-0.5)), 'Wk': _w((lambda *s: torch.randn(*s, dtype=torch.bfloat16) * 3.2)(Dm, H, Dh) * Dm ** (-0.5)), 'Wv': _w((lambda *s: torch.randn(*s, dtype=torch.bfloat16) * 0.8)(Dm, H, Dh) * Dm ** (-0.5)), 'Wo': _w((lambda *s: torch.randn(*s, dtype=torch.bfloat16) * 0.8)(H, Dh, Dm) * (H * Dh) ** (-0.5)), 'seg_len': seg}
    _A_in = _A_setup()

    def _B_setup():
        B, S, D, F, C = (1, 2048, 1024, 3584, 2)
        return {'x': _w((lambda *s: torch.randn(*s, dtype=torch.bfloat16) * 0.05)(B, S, D)), 'w_r': _w((lambda *s: torch.randn(*s, dtype=torch.bfloat16) * 1.6)(D)), 'w_gate': _w((lambda *s: torch.randn(*s, dtype=torch.bfloat16) * 0.2)(D, F)), 'w_up': _w((lambda *s: torch.randn(*s, dtype=torch.bfloat16) * 0.2)(D, F)), 'w_down': _w((lambda *s: torch.randn(*s, dtype=torch.bfloat16) * 0.2)(F, D))}
    _B_in = _B_setup()
    return {'A_x': _A_in['x'], 'A_mem0': _A_in['mem0'], 'A_Wq': _A_in['Wq'], 'A_Wk': _A_in['Wk'], 'A_Wv': _A_in['Wv'], 'A_Wo': _A_in['Wo'], 'A_seg_len': _A_in['seg_len'], 'B_x': _B_in['x'], 'B_w_r': _B_in['w_r'], 'B_w_gate': _B_in['w_gate'], 'B_w_up': _B_in['w_up'], 'B_w_down': _B_in['w_down'], 'gate_w': _w((lambda *s: torch.randn(*s, dtype=torch.bfloat16) * 0.05)(1024) * 16.0)}

def reference(A_x, A_mem0, A_Wq, A_Wk, A_Wv, A_Wo, A_seg_len, B_x, B_w_r, B_w_gate, B_w_up, B_w_down, gate_w):

    def _A_ref(x, mem0, Wq, Wk, Wv, Wo, seg_len):
        B, S, Dm = x.shape
        H, Dh = (Wq.shape[1], Wq.shape[2])
        M = mem0.shape[1]
        scale = Dh ** (-0.5)
        n_seg = S // seg_len
        L = M + seg_len
        idx = torch.arange(L)
        mask = (idx[:, None] < M) | (idx[:, None] >= idx[None, :])
        mem = mem0
        outs = []
        for s in range(n_seg):
            xs = x[:, s * seg_len:(s + 1) * seg_len, :].clone()
            h = torch.concatenate([mem, xs], axis=1)
            q = torch.einsum('btd,dhe->bhte', h, Wq)
            k = torch.einsum('btd,dhe->bhte', h, Wk)
            v = torch.einsum('btd,dhe->bhte', h, Wv)
            scores = torch.einsum('bhqe,bhke->bhqk', q, k) * scale
            scores = torch.where(mask[None, None], scores, -1000000000.0)
            p = _softmax(scores, axis=-1)
            o = torch.einsum('bhqk,bhke->bhqe', p, v)
            o = torch.einsum('bhte,hed->btd', o, Wo)
            mem = o[:, :M, :].clone()
            outs.append(o[:, M:, :])
        return torch.concatenate(outs, axis=1)

    def _B_ref(x, w_r, w_gate, w_up, w_down):
        B, S, D = x.shape
        C = 2
        r = x @ w_r
        idx = torch.argsort(-r, axis=-1)[:, :C]
        idx_e = (lambda x, n, axis: torch.repeat_interleave(x, n, dim=axis))(idx.reshape(B, C, 1), D, axis=2)
        x_sel = (lambda x, i, axis: torch.take_along_dim(x, i, dim=axis))(x, idx_e, axis=1)
        g = _silu(x_sel @ w_gate)
        u = x_sel @ w_up
        y = g * u @ w_down
        r_sel = _sigmoid((lambda x, i, axis: torch.take_along_dim(x, i, dim=axis))(r, idx, axis=1))
        y = y * r_sel.reshape(B, C, 1)
        b_off = (torch.arange(B) * S).reshape(B, 1)
        flat_idx = (idx + b_off).reshape(B * C)
        zero = (x * 0.0).reshape(B * S, D)
        upd = _scatter_add(zero, flat_idx, y.reshape(B * C, D), axis=0)
        return x + upd.reshape(B, S, D)
    x = A_x
    g = _sigmoid((x * gate_w).sum(-1, keepdims=True))
    a = _A_ref(x, A_mem0, A_Wq, A_Wk, A_Wv, A_Wo, A_seg_len)
    b = _B_ref(x, B_w_r, B_w_gate, B_w_up, B_w_down)
    return g * a + (1 - g) * b
```

```python
class Asm:
    def __init__(self):
        self.lines=[]
        self.uid=0
    def __call__(self, s):
        for l in s.strip('\n').split('\n'):
            self.lines.append('  '+l.strip() if not l.strip().endswith(':') else l.strip())
    def label(self, name): self.lines.append(name+':')
    def newlabel(self, p='L'):
        self.uid+=1; return f'{p}_{self.uid}'
    def nop(self, n):
        while n>0:
            k=min(n,16); self(f's_nop {k-1}'); n-=k
    def text(self): return '\n'.join(self.lines)+'\n'
def vr(b,n=1): return f'v{b}' if n==1 else f'v[{b}:{b+n-1}]'
def sr(b,n=1): return f's{b}' if n==1 else f's[{b}:{b+n-1}]'
```

```python
from g6_pro import *
def wave_sum(A,regs,t):
    for sh in (8,4,2,1):
        A('s_nop 1')
        for r in regs: A(f'v_add_f32_dpp v{r}, v{r}, v{r} row_ror:{sh} row_mask:0xf bank_mask:0xf')
    for op in ('v_permlane16_swap_b32','v_permlane32_swap_b32'):
        for r in regs:
            A(f'v_mov_b32 v{t}, v{r}\ns_nop 1\n{op} v{r}, v{t}\ns_nop 1\nv_add_f32 v{r}, v{r}, v{t}')
def gen_gate(A):
    A(f's_cmp_lt_u32 s{sWAVE}, 8\ns_cbranch_scc1 L_GT_SKIP')
    A('v_lshlrev_b32 v2, 5, v0')
    A(f's_lshl_b32 s{sT0}, s2, 14\ns_lshl_b32 s{sT1}, s{sW}, 12\ns_add_u32 s{sT0}, s{sT0}, s{sT1}')
    for rr in range(2):
        for hh in range(2): A(f'buffer_load_dwordx4 {vr(16+8*rr+4*hh,4)}, v2, {sr(sX,4)}, s{sT0} offen offset:{2048*rr+16*hh}')
    srd(A,sT,56,2048)
    for hh in range(2): A(f'buffer_load_dwordx4 {vr(32+4*hh,4)}, v2, {sr(sT,4)}, 0 offen offset:{16*hh}')
    srd(A,sT,48,2048)
    for hh in range(2): A(f'buffer_load_dwordx4 {vr(40+4*hh,4)}, v2, {sr(sT,4)}, 0 offen offset:{16*hh}')
    for i in range(4): A(f'v_mov_b32 v{8+i}, 0')
    A('s_waitcnt vmcnt(0)')
    A(f's_mul_i32 s{sT0}, s{sW}, {2*XSROW}\ns_add_u32 s{sT0}, s{sT0}, {L_XS}\nv_add_u32 v3, s{sT0}, v2')
    for rr in range(2):
        for hh in range(2): A(f'ds_write_b128 v3, {vr(16+8*rr+4*hh,4)} offset:{XSROW*rr+16*hh}')
    for d in range(8):
        A(f'v_lshlrev_b32 v48, 16, v{32+d}\nv_and_b32 v49, 0xffff0000, v{32+d}\nv_lshlrev_b32 v50, 16, v{40+d}\nv_and_b32 v51, 0xffff0000, v{40+d}')
        for rr in range(2):
            A(f'v_lshlrev_b32 v52, 16, v{16+8*rr+d}\nv_and_b32 v53, 0xffff0000, v{16+8*rr+d}')
            A(f'v_fmac_f32 v{8+rr}, v52, v48\nv_fmac_f32 v{10+rr}, v52, v50\nv_fmac_f32 v{8+rr}, v53, v49\nv_fmac_f32 v{10+rr}, v53, v51')
    wave_sum(A,[8,9,10,11],12)
    A('v_cvt_pk_bf16_f32 v12, v8, v9\nv_cvt_pk_bf16_f32 v13, v10, v11\nv_lshlrev_b32 v8, 16, v12\nv_and_b32 v9, 0xffff0000, v12\nv_lshlrev_b32 v10, 16, v13\nv_and_b32 v11, 0xffff0000, v13')
    for r in (8,9):
        A(f'v_mul_f32 v{r}, 0xbfb8aa3b, v{r}\nv_exp_f32 v{r}, v{r}\ns_nop 0\nv_add_f32 v{r}, 1.0, v{r}\nv_rcp_f32 v{r}, v{r}\ns_nop 0')
    A('v_cvt_pk_bf16_f32 v12, v8, v9\nv_lshlrev_b32 v8, 16, v12\nv_and_b32 v9, 0xffff0000, v12')
    A(f's_lshl_b32 s{sT0}, s2, 5\ns_lshl_b32 s{sT1}, s{sW}, 3\ns_add_u32 s{sT0}, s{sT0}, s{sT1}\ns_add_u32 s{sT0}, s{sT0}, {GR}\ns_add_u32 s{sT1}, s{sT0}, 8192')
    A(f's_mov_b64 exec, 1\nv_mov_b32 v12, 0\nbuffer_store_dwordx2 v[8:9], v12, {WS}, s{sT0} offen sc1\nbuffer_store_dwordx2 v[10:11], v12, {WS}, s{sT1} offen sc1\ns_mov_b64 exec, -1')
    A('s_waitcnt lgkmcnt(0)')
    A('L_GT_SKIP:')

def gen_xf(A):
    A(f's_cmp_lt_u32 s{sWAVE}, 8\ns_cbranch_scc1 L_XF_SKIP')
    A('v_lshrrev_b32 v2, 3, v0\nv_and_b32 v3, 7, v0')
    A(f'v_mul_u32_u24 v4, {XSROW}, v3\nv_and_b32 v5, 3, v2\nv_lshlrev_b32 v5, 6, v5\nv_add_u32 v4, v4, v5\nv_lshrrev_b32 v5, 2, v2\nv_lshlrev_b32 v5, 4, v5\nv_add_u32 v4, v4, v5')
    A(f's_lshl_b32 s{sT0}, s{sW}, 9\ns_add_u32 s{sT0}, s{sT0}, {L_XS}\nv_add_u32 v4, s{sT0}, v4')
    for q in range(4):
        A(f'ds_read_b128 {vr(16+4*q,4)}, v4 offset:{256*(q>>1)+32*(q&1)}')
    A('v_lshlrev_b32 v5, 8, v2\nv_lshlrev_b32 v6, 4, v3\nv_add_u32 v5, v5, v6')
    A(f's_lshr_b32 s{sT0}, s2, 1\ns_lshl_b32 s{sT0}, s{sT0}, 15\ns_and_b32 s{sT1}, s2, 1\ns_lshl_b32 s{sT1}, s{sT1}, 7\ns_add_u32 s{sT0}, s{sT0}, s{sT1}\ns_lshl_b32 s{sT1}, s{sW}, 13\ns_add_u32 s{sT0}, s{sT0}, s{sT1}\ns_add_u32 s{sT0}, s{sT0}, {XF}\ns_add_u32 s{sT1}, s{sT0}, 4096')
    A('s_waitcnt lgkmcnt(0)')
    for q in range(4): A(f'buffer_store_dwordx4 {vr(16+4*q,4)}, v5, {WS}, s{sT0 if q<2 else sT1} offen offset:{2048*(q&1)} sc1')
    A('L_XF_SKIP:')

def gen_bk(A,P,stamp):
    vL16=1; vXo=2; vFL=3; vSo=4; vT0=5; vT1=6; vFQ=7; vQ4=8
    vA=16; vX=136
    sXb=78; sSt=79; sPn=80; sXr=81; sXw=82; sFl=83; sCEXP=84; sU=85; sTC=86; sXb2=87
    w=sW
    A('L_BK:')
    A(f's_cmp_lg_u32 s{w}, 0\ns_cbranch_scc1 L_BK0')
    A(f's_lshl_b32 s{sT0}, s2, 2\ns_add_u32 s{sT0}, s{sT0}, {FLG+FGo}\ns_mov_b64 exec, 1\nv_mov_b32 v8, 100\nv_mov_b32 v9, 0\nbuffer_store_dword v8, v9, {WS}, s{sT0} offen sc1\ns_mov_b64 exec, -1')
    A('L_BK0:')
    A(f'v_and_b32 v{vT0}, 15, v0\nv_lshlrev_b32 v{vXo}, 11, v{vT0}\nv_lshrrev_b32 v{vT1}, 4, v0\nv_lshlrev_b32 v8, 6, v{vT1}\nv_add_u32 v{vXo}, v{vXo}, v8')
    A(f's_lshl_b32 s{sT0}, s{w}, 2\ns_add_u32 s{sT0}, s{sT0}, {L_FL}\nv_mov_b32 v{vFL}, s{sT0}')
    A(f'v_lshlrev_b32 v{vSo}, 4, v{vT0}\nv_and_b32 v8, 1, v{vT1}\nv_lshlrev_b32 v8, 3, v8\nv_add_u32 v{vSo}, v{vSo}, v8\nv_lshrrev_b32 v8, 1, v{vT1}')
    A(f's_lshl_b32 s{sSt}, s{sXC}, 2\ns_lshr_b32 s{sT0}, s{sR}, 3\ns_add_u32 s{sSt}, s{sSt}, s{sT0}\ns_lshl_b32 s{sSt}, s{sSt}, 13')
    A(f's_cmp_eq_u32 s{w}, 2\ns_cbranch_scc1 L_BK1')
    A(f'v_lshlrev_b32 v8, 11, v8\ns_bfe_u32 s{sT0}, s{sR}, 0x10002\ns_lshl_b32 s{sT0}, s{sT0}, 10\ns_and_b32 s{sT1}, s{sR}, 3\ns_lshl_b32 s{sT1}, s{sT1}, 8\ns_add_u32 s{sT0}, s{sT0}, s{sT1}\ns_branch L_BK2')
    A('L_BK1:')
    A(f'v_lshlrev_b32 v8, 8, v8\ns_and_b32 s{sT0}, s{sR}, 7\ns_lshl_b32 s{sT0}, s{sT0}, 9')
    A('L_BK2:')
    A(f'v_add_u32 v{vSo}, v{vSo}, v8\ns_add_u32 s{sSt}, s{sSt}, s{sT0}\ns_lshl_b32 s{sT0}, s{w}, 24\ns_add_u32 s{sSt}, s{sSt}, s{sT0}\ns_add_u32 s{sSt}, s{sSt}, {QX}')
    A(f's_mul_i32 s{sFl}, s{sXC}, 384\ns_lshl_b32 s{sT0}, s{w}, 7\ns_add_u32 s{sFl}, s{sFl}, s{sT0}\ns_lshl_b32 s{sT0}, s{sR}, 2\ns_add_u32 s{sFl}, s{sFl}, s{sT0}\ns_add_u32 s{sFl}, s{sFl}, {FLG+F1o}')
    A(f's_mul_i32 s{sXw}, s{w}, 3072\ns_add_u32 s{sXw}, s{sXw}, {L_XR}\ns_lshl_b32 s{sXr}, s{w}, 10\ns_add_u32 s{sXr}, s{sXr}, {L_XR}')
    A(f's_lshl_b32 s{sXb}, s{w}, 13\ns_add_u32 s{sXb}, s{sXb}, {XF}\ns_add_u32 s{sXb2}, s{sXb}, 4096')
    A(f's_mov_b32 s{sPn}, s{sR}\ns_mov_b32 s{sCEXP}, 0x3e0293ee\ns_mov_b32 s{sTC}, 0')
    xload=lambda t: A(f'buffer_load_dwordx4 {vr(vX+4*t,4)}, v{vL16}, {WS}, s{sXb if t<4 else sXb2} offen offset:{(t&3)*1024}')
    def fgwait(tag,sblk):
        A(f'v_lshlrev_b32 v8, 2, v0\ns_lshl_b32 s{sT0}, s{sblk}, 8\ns_add_u32 s{sT0}, s{sT0}, {FLG+FGo}')
        A(f'L_{tag}:')
        A(f'buffer_load_dword v9, v8, {WS}, s{sT0} offen sc1\ns_waitcnt vmcnt(0)\nv_cmp_eq_u32 vcc, 0, v9\ns_cbranch_vccz L_{tag}K')
        A('s_sleep 1')
        spin(A,f'L_{tag}')
        A(f'L_{tag}K:')
    fgwait('FG0',sTC)
    for t in range(8): xload(t)
    A(f's_add_u32 s{sXb}, s{sXb}, 32768\ns_add_u32 s{sXb2}, s{sXb2}, 32768')
    A('L_XP:')
    A('L_XPT:')
    A(f'v_mov_b32 v{vT1}, {L_FL+F_KM}\nds_read_b32 v{vT0}, v{vFL} offset:{F_R1}\nds_read_b128 v[8:11], v{vT1}\ns_waitcnt lgkmcnt(0)\nv_min3_u32 v8, v8, v9, v10\nv_min_u32 v8, v8, v11\nv_readfirstlane_b32 s{sT0}, v{vT0}\nv_readfirstlane_b32 s{sT1}, v8')
    A(f's_cmp_gt_u32 s{sT1}, s{sPn}\ns_cbranch_scc1 L_PT')
    A(f's_cmp_ge_u32 s{sTC}, 128\ns_cbranch_scc1 L_XPE')
    A(f's_add_u32 s{sT0}, s{sT0}, {P["AHEAD"]}\ns_lshl_b32 s{sT0}, s{sT0}, 1\ns_cmp_lt_u32 s{sTC}, s{sT0}\ns_cbranch_scc1 L_XPG')
    A('s_branch L_XPW')
    A('L_XPE:')
    A(f's_cmp_ge_u32 s{sPn}, 64\ns_cbranch_scc1 L_BK_DONE')
    A('L_XPW:')
    A('s_sleep 2')
    spin(A,'L_XPT')
    A('L_XPG:')
    A(f's_add_u32 s{sU}, s{sTC}, 1\ns_and_b32 s{sT0}, s{sU}, 31\ns_cmp_lg_u32 s{sT0}, 0\ns_cbranch_scc1 L_XPG2\ns_cmp_ge_u32 s{sU}, 128\ns_cbranch_scc1 L_XPG2\ns_lshr_b32 s{sU}, s{sU}, 5')
    fgwait('FG1',sU)
    A('L_XPG2:')
    for t in range(8):
        A('s_waitcnt vmcnt(7)')
        for m in range(3):
            A(f'{MF} {vr(vA+4*m,4)}, {F(m,t)}, {vr(vX+4*t,4)}, {"0" if t==0 else vr(vA+4*m,4)}')
        xload(t)
    A(f's_add_u32 s{sXb}, s{sXb}, 32768\ns_add_u32 s{sXb2}, s{sXb2}, 32768')
    A(f's_and_b32 s{sT0}, s{sTC}, 1\ns_cmp_lg_u32 s{sT0}, 0\ns_cbranch_scc1 L_XPF\ns_cmp_eq_u32 s{sTC}, 0\ns_cbranch_scc1 L_XPF\ns_cmp_eq_u32 s{w}, 3\ns_cbranch_scc1 L_XPF')
    A(f's_lshr_b32 s{sT1}, s{sTC}, 1\ns_mov_b64 exec, 1\nv_mov_b32 v8, s{sT1}\nv_mov_b32 v9, 0\nbuffer_store_dword v8, v9, {WS}, s{sFl} offen sc1\ns_mov_b64 exec, -1')
    A('L_XPF:')
    A(f's_mul_i32 s{sT1}, s{sT0}, 12288\ns_add_u32 s{sT2}, s{sT1}, s{sXw}\nv_add_u32 v{vT0}, s{sT2}, v{vL16}\ns_add_u32 s{sT2}, s{sT1}, s{sXr}\nv_add_u32 v{vT1}, s{sT2}, v{vL16}')
    A(f's_add_u32 s{sU}, s{sTC}, 1\nv_mov_b32 v8, s{sU}\nv_mov_b32 v9, {L_FL+F_XR}')
    A.nop(2)
    for m in range(3): A(f'ds_write_b128 v{vT0}, {vr(vA+4*m,4)} offset:{1024*m}')
    A(f'ds_write_b32 v{vFL}, v8 offset:{F_XR}')
    p=vA
    A('L_XRP:')
    A(f'ds_read_b128 {vr(p+16,4)}, v9\ns_waitcnt lgkmcnt(0)')
    A(f'v_min3_u32 v10, v{p+16}, v{p+17}, v{p+18}\nv_min_u32 v10, v10, v{p+19}\nv_cmp_gt_u32 vcc, s{sU}, v10\ns_cbranch_vccz L_XRK')
    A('s_sleep 1')
    spin(A,'L_XRP')
    A('L_XRK:')
    A(f's_cmp_eq_u32 s{w}, 3\ns_cbranch_scc1 L_XRS')
    for src in range(4): A(f'ds_read_b128 {vr(p+4*src,4)}, v{vT1} offset:{3072*src}')
    A('s_waitcnt lgkmcnt(0)')
    A(f'v_pk_add_f32 {vr(p,2)}, {vr(p,2)}, {vr(p+4,2)}\nv_pk_add_f32 {vr(p+2,2)}, {vr(p+2,2)}, {vr(p+6,2)}\nv_pk_add_f32 {vr(p+8,2)}, {vr(p+8,2)}, {vr(p+12,2)}\nv_pk_add_f32 {vr(p+10,2)}, {vr(p+10,2)}, {vr(p+14,2)}')
    A(f'v_pk_add_f32 {vr(p,2)}, {vr(p,2)}, {vr(p+8,2)}\nv_pk_add_f32 {vr(p+2,2)}, {vr(p+2,2)}, {vr(p+10,2)}')
    A(f'v_cvt_pk_bf16_f32 v{p+20}, v{p}, v{p+1}\nv_cvt_pk_bf16_f32 v{p+21}, v{p+2}, v{p+3}')
    A(f's_lshr_b32 s{sT1}, s{sTC}, 1\ns_lshl_b32 s{sT1}, s{sT1}, 18\ns_and_b32 s{sT0}, s{sTC}, 1\ns_lshl_b32 s{sT0}, s{sT0}, 12\ns_add_u32 s{sT1}, s{sT1}, s{sT0}\ns_add_u32 s{sT1}, s{sT1}, s{sSt}')
    A(f'buffer_store_dwordx2 {vr(p+20,2)}, v{vSo}, {WS}, s{sT1} offen sc1')
    A(f's_and_b32 s{sT0}, s{sTC}, 1\ns_cmp_eq_u32 s{sT0}, 0\ns_cbranch_scc1 L_XRS')
    A(f's_waitcnt vmcnt(0)\ns_lshr_b32 s{sT1}, s{sU}, 1\ns_mov_b64 exec, 1\nv_mov_b32 v8, s{sT1}\nv_mov_b32 v9, 0\nbuffer_store_dword v8, v9, {WS}, s{sFl} offen sc1\ns_mov_b64 exec, -1')
    A('L_XRS:')
    A(f's_add_u32 s{sTC}, s{sTC}, 1\ns_branch L_XP')
    A('L_PT:')
    A('s_waitcnt vmcnt(0)')
    A(f's_mul_i32 s{sT0}, s{sXC}, 384\ns_lshl_b32 s{sT1}, s{w}, 5\ns_add_u32 s{sT0}, s{sT0}, s{sT1}\ns_add_u32 s{sT0}, s{sT0}, {FLG+F1o}\nv_and_b32 v8, 7, v0\nv_lshlrev_b32 v8, 2, v8')
    A('L_PQ:')
    A(f'buffer_load_dword v9, v8, {WS}, s{sT0} offen sc1\ns_waitcnt vmcnt(0)\nv_cmp_ge_u32 vcc, s{sPn}, v9\ns_cbranch_vccz L_PQK')
    spin(A,'L_PQ')
    A('L_PQK:')
    A(f's_lshl_b32 s{sT2}, s{sPn}, 5\ns_lshl_b32 s{sT0}, s{sXC}, 2\ns_add_u32 s{sT2}, s{sT2}, s{sT0}\ns_add_u32 s{sT2}, s{sT2}, s{w}\ns_lshl_b32 s{sT3}, s{sT2}, 12\ns_add_u32 s{sT3}, s{sT3}, {PB}\ns_lshl_b32 s{sT2}, s{sT2}, 13')
    vQ=136; vK=152; kmreg=[28,32,36,12]; T0,T1,T2=16,20,24
    A(f's_add_u32 s{sT0}, s{sT2}, {KXG}')
    for f in range(4): A(f'buffer_load_dwordx4 {vr(vK+4*f,4)}, v{vL16}, {WS}, s{sT0} offen offset:{1024*f} sc1')
    A(f'v_lshrrev_b32 v8, 4, v0\nv_lshlrev_b32 v8, 3, v8\nv_and_b32 v9, 7, v0\nv_add_u32 v8, v8, v9\nv_lshlrev_b32 v8, 4, v8\ns_lshl_b32 s{sT0}, s{w}, 11\ns_add_u32 s{sT0}, s{sT0}, {L_KM}\nv_add_u32 v{vFQ}, s{sT0}, v8')
    def tri(T):
        A(f'v_lshrrev_b32 v8, 4, v0\nv_lshlrev_b32 v8, 2, v8\nv_and_b32 v9, 15, v0\nv_sub_u32 v9, v9, v8\nv_mov_b32 v10, 0xf149f2ca')
        for r in range(4): A(f'v_cmp_gt_i32 vcc, {r}, v9\ns_nop 1\nv_cndmask_b32 v{T+r}, 0, v10, vcc')
    for rt in range(2):
        A(f's_add_u32 s{sT0}, s{sT2}, {QX+4096*rt}')
        for f in range(4): A(f'buffer_load_dwordx4 {vr(vQ+4*f,4)}, v{vL16}, {WS}, s{sT0} offen offset:{1024*f} sc1')
        for f in range(4): A(f'ds_read_b128 {vr(kmreg[f],4)}, v{vFQ} offset:{512*f}')
        for i in range(4): A(f'v_mov_b32 v{T0+i}, 0')
        A(f's_mov_b64 exec, {sr(sLO,2)}')
        for i in range(4): A(f'v_mov_b32 v{T0+i}, 0xf149f2ca')
        A('s_mov_b64 exec, -1')
        if rt==0:
            tri(T1)
            for i in range(4): A(f'v_mov_b32 v{T2+i}, 0xf149f2ca')
        else:
            for i in range(4): A(f'v_mov_b32 v{T1+i}, 0')
            tri(T2)
        A('s_waitcnt vmcnt(0) lgkmcnt(0)')
        for f in range(4):
            A(f'{MF} {vr(T0,4)}, {vr(kmreg[f],4)}, {vr(vQ+4*f,4)}, {vr(T0,4)}')
            A(f'{MF} {vr(T1,4)}, {vr(vK+4*f,4)}, {vr(vQ+4*f,4)}, {vr(T1,4)}')
        if rt==1:
            A(f's_add_u32 s{sT0}, s{sT2}, {KXG+4096}')
            for f in range(4): A(f'buffer_load_dwordx4 {vr(vK+4*f,4)}, v{vL16}, {WS}, s{sT0} offen offset:{1024*f} sc1')
            A('s_waitcnt vmcnt(0)')
            for f in range(4): A(f'{MF} {vr(T2,4)}, {vr(vK+4*f,4)}, {vr(vQ+4*f,4)}, {vr(T2,4)}')
        A.nop(8)
        S=16; mx=8; t1=9
        A(f'v_max3_f32 v{mx}, v{S}, v{S+1}, v{S+2}\nv_max3_f32 v{t1}, v{S+3}, v{S+4}, v{S+5}\nv_max3_f32 v{mx}, v{mx}, v{S+6}, v{S+7}\nv_max3_f32 v{t1}, v{t1}, v{S+8}, v{S+9}\nv_max3_f32 v{mx}, v{mx}, v{S+10}, v{S+11}\nv_max_f32 v{mx}, v{mx}, v{t1}')
        A(f'v_mov_b32 v{t1}, v{mx}\ns_nop 1\nv_permlane32_swap_b32 v{mx}, v{t1}\ns_nop 1\nv_max_f32 v{mx}, v{mx}, v{t1}')
        A(f'v_mov_b32 v{t1}, v{mx}\ns_nop 1\nv_permlane16_swap_b32 v{mx}, v{t1}\ns_nop 1\nv_max_f32 v{mx}, v{mx}, v{t1}')
        A(f'v_mul_f32 v{mx}, s{sCEXP}, v{mx}')
        for i in range(12): A(f'v_fma_f32 v{S+i}, v{S+i}, s{sCEXP}, -v{mx}')
        for i in range(12): A(f'v_exp_f32 v{S+i}, v{S+i}')
        A('s_nop 0')
        A(f'v_add_f32 v{mx}, v{S}, v{S+1}')
        for i in range(2,12): A(f'v_add_f32 v{mx}, v{mx}, v{S+i}')
        A(f'v_mov_b32 v{t1}, v{mx}\ns_nop 1\nv_permlane32_swap_b32 v{mx}, v{t1}\ns_nop 1\nv_add_f32 v{mx}, v{mx}, v{t1}')
        A(f'v_mov_b32 v{t1}, v{mx}\ns_nop 1\nv_permlane16_swap_b32 v{mx}, v{t1}\ns_nop 1\nv_add_f32 v{mx}, v{mx}, v{t1}')
        A(f'v_rcp_f32 v{mx}, v{mx}\ns_nop 0')
        for i in range(12): A(f'v_mul_f32 v{S+i}, v{S+i}, v{mx}')
        o=28
        A(f'v_cvt_pk_bf16_f32 v{o}, v{T1}, v{T1+1}\nv_cvt_pk_bf16_f32 v{o+1}, v{T1+2}, v{T1+3}\nv_cvt_pk_bf16_f32 v{o+2}, v{T2}, v{T2+1}\nv_cvt_pk_bf16_f32 v{o+3}, v{T2+2}, v{T2+3}')
        A(f'v_cvt_pk_bf16_f32 v{o+4}, v{T0}, v{T0+1}\nv_cvt_pk_bf16_f32 v{o+5}, v{T0+2}, v{T0+3}\nv_cvt_pk_bf16_f32 v{o+6}, v{T0}, v{T0+1}\nv_cvt_pk_bf16_f32 v{o+7}, v{T0+2}, v{T0+3}\ns_nop 1')
        A(f'v_permlane32_swap_b32 v{o+6}, v{o+4}\nv_permlane32_swap_b32 v{o+7}, v{o+5}\nv_lshrrev_b32 v8, 1, v{vL16}\ns_nop 1')
        A(f'buffer_store_dwordx4 {vr(o,4)}, v{vL16}, {WS}, s{sT3} offen offset:{2048*rt} sc1')
        A(f'buffer_store_dwordx2 {vr(o+4,2)}, v8, {WS}, s{sT3} offen offset:{2048*rt+1024} sc1')
        A('s_waitcnt vmcnt(0)')
    A(f's_lshl_b32 s{sT0}, s{sXC}, 2\ns_add_u32 s{sT0}, s{sT0}, s{w}\ns_lshl_b32 s{sT0}, s{sT0}, 6\ns_add_u32 s{sT0}, s{sT0}, s{sPn}\ns_lshl_b32 s{sT0}, s{sT0}, 2\ns_add_u32 s{sT0}, s{sT0}, {FLG+F2o}\ns_add_u32 s{sT1}, s{sPn}, 1')
    A(f's_mov_b64 exec, 1\nv_mov_b32 v8, s{sT1}\nv_mov_b32 v9, 0\nbuffer_store_dword v8, v9, {WS}, s{sT0} offen sc1\ns_mov_b64 exec, -1')
    A(f's_add_u32 s{sPn}, s{sPn}, 32')
    A(f's_sub_u32 s{sXb}, s{sXb}, 32768\ns_sub_u32 s{sXb2}, s{sXb2}, 32768')
    for t in range(8): xload(t)
    A(f's_add_u32 s{sXb}, s{sXb}, 32768\ns_add_u32 s{sXb2}, s{sXb2}, 32768\ns_branch L_XP')
    A('L_BK_DONE:')
    A('s_waitcnt vmcnt(0) lgkmcnt(0)\ns_endpgm')
```

```python
from asmlib import *
KNAME='gated_mix__memory_aug_recurrent_mem_tr__moe_arch_mod__prompt_kernel'
CBUF=0x000000; ABUF=0x080000; FLG=0x180000
BBMIN=0x200000
GR=0x800000; HB=0x810000; YP=0x820000
AO=0x900000
XF=0x1800000; L_XS=131072; XSROW=2064
PB=0x1000000; QX=0x2000000; KXG=0x3000000; VXG=0x4000000; OB=0x6000000
DBGW=0xA000000
F1o=0; F2o=0x1000; F3o=0x4000; FGo=0x8000; FHo=0x8400; FYo=0x8800
L_R1=0; L_R2=6144; L_FL=12288; L_VWM=13312; L_VWX=29696; L_OR=62464; L_KM=95232; L_XR=103424; L_G=128000; L_ROLE=160768
LDS_BYTES=160768+256
F_R1=0; F_R1V=16; F_R2=32; F_VWM=48; F_CH=64; F_OR=80; F_XR=96; F_KM=112; F_PRG=128; F_XRC=144; F_MISC=160
SPIN=1<<22
sWS=4; sX=8; sT=12; sOUT=16; sDBG=20
sWAVE=24; sXC=25; sR=26; sMODE=27; sS=28; sS1=29; sT0=30; sT1=31
sW=64; sT2=65; sT3=66; sSPIN=67; sSPG=68; sBB=69; sNUMA=70
sM8=90; sLO=92; sHI=94; sCM=96
MF='v_mfma_f32_16x16x32_bf16'
def srd(A,b,p,size):
    A(f's_mov_b32 s{b}, s{p}\ns_and_b32 s{b+1}, s{p+1}, 0xffff\ns_mov_b32 s{b+2}, {size}\ns_mov_b32 s{b+3}, 0x20000')
def spin(A,back):
    A(f's_add_u32 s{sSPIN}, s{sSPIN}, 1\ns_cmp_lt_u32 s{sSPIN}, {SPIN}\ns_cbranch_scc1 {back}\ns_branch L_END')
def delay(A,n):
    if n<=0: return
    k=n//64
    if k>0: A(f's_sleep {k}')
    r=(n%64)//4
    if r>0: A.nop(r)
WS=sr(sWS,4)
```

```python
from g6_common import *
vWF=40
vWG=136
def F(m,t): return vr(vWF+(m*8+t)*4,4)
def G(t,ct): return vr(vWG+(t*2+ct)*4,4)
def prologue(A):
    A.lines += [f'; @launch grid=(256,1,1) block=(768,1,1) lds={LDS_BYTES}',
      '.amdgcn_target "amdgcn-amd-amdhsa--gfx950"','.text',f'.globl {KNAME}','.p2align 8',f'.type {KNAME},@function',f'{KNAME}:']
    A('s_cmp_ge_u32 s2, 256\ns_cbranch_scc1 L_END')
    A('s_load_dwordx16 s[32:47], s[0:1], 0\ns_load_dwordx16 s[48:63], s[0:1], 64')
    A(f'v_lshrrev_b32 v2, 6, v0\nv_and_b32 v0, 63, v0\nv_readfirstlane_b32 s{sWAVE}, v2\nv_lshlrev_b32 v1, 4, v0')
    A(f's_and_b32 s{sW}, s{sWAVE}, 3')
    A('s_waitcnt lgkmcnt(0)')
    srd(A,sWS,62,0x10000000); srd(A,sX,32,4194304); srd(A,sOUT,58,4194304); srd(A,sDBG,60,256)
    A(f's_mov_b32 s{sM8}, 0x00ff00ff\ns_mov_b32 s{sM8+1}, 0x00ff00ff\ns_mov_b32 s{sLO}, -1\ns_mov_b32 s{sLO+1}, 0\ns_mov_b32 s{sHI}, 0\ns_mov_b32 s{sHI+1}, -1\ns_mov_b32 s{sCM}, 0x00ff00ff\ns_mov_b32 s{sCM+1}, 0')
    A(f's_add_u32 s{sBB}, s62, {BBMIN+0x1fffff}\ns_and_b32 s{sBB}, s{sBB}, 0xffe00000\ns_sub_u32 s{sBB}, s{sBB}, s62')
    A(f's_mov_b32 s{sSPIN}, 0\ns_mov_b32 s{sSPG}, 0')
    A('v_mov_b32 v4, -1\nv_mov_b32 v5, -1\nv_mov_b32 v6, -1\nv_mov_b32 v7, -1')
    A(f's_cmp_ge_u32 s{sWAVE}, 8\ns_cbranch_scc1 L_PB')
    A(f's_lshl_b32 s{sT0}, s2, 14\ns_add_u32 s{sT0}, s{sT0}, s{sBB}\ns_lshl_b32 s{sT1}, s{sWAVE}, 10\ns_add_u32 s{sT0}, s{sT0}, s{sT1}\ns_add_u32 s{sT1}, s{sT0}, 8192')
    A(f'buffer_store_dwordx4 v[4:7], v1, {WS}, s{sT0} offen sc1\nbuffer_store_dwordx4 v[4:7], v1, {WS}, s{sT1} offen sc1\ns_branch L_PD')
    A('L_PB:')
    A(f's_mul_i32 s{sT0}, s2, 5120\ns_lshl_b32 s{sT1}, s{sW}, 10\ns_add_u32 s{sT1}, s{sT1}, s{sT0}')
    A(f'buffer_store_dwordx4 v[4:7], v1, {WS}, s{sT1} offen sc1')
    A(f's_cmp_lg_u32 s{sW}, 0\ns_cbranch_scc1 L_PC\ns_add_u32 s{sT1}, s{sT0}, 4096')
    A(f'buffer_store_dwordx4 v[4:7], v1, {WS}, s{sT1} offen sc1')
    A('L_PC:')
    A(f's_cmp_lg_u32 s{sW}, 1\ns_cbranch_scc1 L_PD')
    A(f'v_mov_b32 v8, 0\nv_lshlrev_b32 v9, 2, v0\ns_lshl_b32 s{sT1}, s2, 8\ns_add_u32 s{sT1}, s{sT1}, {FLG}')
    A(f'buffer_store_dword v8, v9, {WS}, s{sT1} offen sc1')
    A('L_PD:')
    A(f's_getreg_b32 s{sXC}, hwreg(HW_REG_XCC_ID)\ns_and_b32 s{sXC}, s{sXC}, 15')
    A(f's_cmp_lg_u32 s{sWAVE}, 0\ns_cbranch_scc1 L_C0')
    A(f's_lshl_b32 s{sT0}, s{sXC}, 2\ns_mov_b64 exec, 1\nv_mov_b32 v8, 1\nv_mov_b32 v9, s{sT0}')
    A(f'buffer_atomic_add v8, v9, {sr(sDBG,4)}, 0 offen sc0')
    A(f's_waitcnt vmcnt(0)\nv_readfirstlane_b32 s{sR}, v8\ns_mov_b64 exec, -1')
    A('L_C0:')
    A(f's_cmp_lg_u32 s{sWAVE}, 1\ns_cbranch_scc1 L_C1')
    A(f's_cmp_ge_u32 s{sXC}, 8\ns_cbranch_scc1 L_C1')
    A('s_waitcnt vmcnt(0)\ns_mov_b64 exec, 1\nv_mov_b32 v9, 0')
    A('s_mov_b32 s72, 0x7fffffff\ns_mov_b32 s73, 0x7fffffff')
    for rep in range(2):
        for h,(so,acc) in enumerate(((sT0,72),(sT1,73))):
            A(f's_memtime s[74:75]\ns_waitcnt lgkmcnt(0)\nbuffer_load_dword v8, v9, {WS}, s{so} offen offset:{256*rep} sc1\ns_waitcnt vmcnt(0)\ns_memtime s[76:77]\ns_waitcnt lgkmcnt(0)\ns_sub_u32 s76, s76, s74\ns_min_u32 s{acc}, s{acc}, s76')
    A(f's_cmp_lt_u32 s73, s72\ns_cselect_b32 s72, 0x10000, 1')
    A(f's_lshr_b32 s73, s2, 7\ns_lshl_b32 s73, s73, 3\ns_add_u32 s73, s73, s{sXC}\ns_lshl_b32 s73, s73, 2\ns_add_u32 s73, s73, 128')
    A(f'v_mov_b32 v8, s72\nv_mov_b32 v9, s73\nbuffer_atomic_add v8, v9, {sr(sDBG,4)}, 0 offen')
    A(f'v_mov_b32 v9, 0\nv_mov_b32 v10, -1')
    for rep in range(2):
        for so in (sT0,sT1): A(f'buffer_store_dword v10, v9, {WS}, s{so} offen offset:{256*rep} sc1')
    A('s_mov_b64 exec, -1')
    A('L_C1:')
    A('s_waitcnt vmcnt(0)\ns_barrier')
    A(f's_cmp_lg_u32 s{sWAVE}, 0\ns_cbranch_scc1 L_C2')
    A(f's_mov_b64 exec, 1\nv_mov_b32 v8, 1\nv_mov_b32 v9, 64')
    A(f'buffer_atomic_add v8, v9, {sr(sDBG,4)}, 0 offen')
    A(f's_mov_b64 exec, -1\nv_lshlrev_b32 v9, 2, v0')
    A('L_C3:')
    A(f'buffer_load_dword v8, v9, {sr(sDBG,4)}, 0 offen sc1\ns_waitcnt vmcnt(0)')
    A(f'v_readlane_b32 s{sT0}, v8, 16\ns_cmp_eq_u32 s{sT0}, 256\ns_cbranch_scc1 L_C4')
    A(f's_sleep 2\ns_add_u32 s{sSPIN}, s{sSPIN}, 1\ns_cmp_lt_u32 s{sSPIN}, {SPIN}\ns_cbranch_scc1 L_C3')
    A('L_C4:')
    A(f'v_lshrrev_b32 v10, 16, v8\nv_and_b32 v11, 0xffff, v8\nv_cmp_gt_u32 vcc, v10, v11\ns_and_b32 s{sNUMA}, vcc_hi, 0xffff')
    A(f's_and_b32 s{sT0}, s{sNUMA}, 0xff\ns_bcnt1_i32_b32 s{sT1}, s{sT0}\ns_cmp_eq_u32 s{sT1}, 4\ns_cselect_b32 s{sT0}, s{sT0}, 0xf0')
    A(f's_lshr_b32 s{sT2}, s{sNUMA}, 8\ns_bcnt1_i32_b32 s{sT1}, s{sT2}\ns_cmp_eq_u32 s{sT1}, 4\ns_cselect_b32 s{sT2}, s{sT2}, 0xf0\ns_lshl_b32 s{sT2}, s{sT2}, 8\ns_or_b32 s{sNUMA}, s{sT0}, s{sT2}')
    A(f'v_cmp_eq_u32 vcc, 32, v8\ns_and_b32 s{sT0}, vcc_lo, 0xff\ns_mov_b32 s{sMODE}, 0\ns_cmp_eq_u32 s{sT0}, 0xff\ns_cbranch_scc1 L_C5')
    A(f's_mov_b32 s{sMODE}, 1\ns_lshr_b32 s{sXC}, s2, 5\ns_and_b32 s{sR}, s2, 31\ns_mov_b32 s{sNUMA}, 0xf0f0')
    A('L_C5:')
    A(f'v_mov_b32 v8, s{sXC}\nv_mov_b32 v9, s{sR}\nv_mov_b32 v10, s{sMODE}\nv_mov_b32 v11, s{sNUMA}\nv_mov_b32 v12, {L_ROLE}')
    A('ds_write_b128 v12, v[8:11]\ns_waitcnt lgkmcnt(0)')
    A('L_C2:')
    A('s_barrier')
    A(f'v_mov_b32 v12, {L_ROLE}\nds_read_b128 v[8:11], v12\ns_waitcnt lgkmcnt(0)')
    A(f'v_readfirstlane_b32 s{sXC}, v8\nv_readfirstlane_b32 s{sR}, v9\nv_readfirstlane_b32 s{sMODE}, v10\nv_readfirstlane_b32 s{sNUMA}, v11')
    A(f's_and_b32 s{sXC}, s{sXC}, 7\ns_and_b32 s{sR}, s{sR}, 31')
    A(f's_cmp_ge_u32 s{sWAVE}, 8\ns_cbranch_scc1 L_WD')
    A(f's_lshl_b32 s{sT0}, s{sXC}, 10\ns_lshl_b32 s{sT1}, s{sR}, 5\ns_add_u32 s{sT0}, s{sT0}, s{sT1}')
    A(f's_lshl_b32 s{sT1}, s{sWAVE}, 18\ns_add_u32 s{sT0}, s{sT0}, s{sT1}')
    A(f'v_lshrrev_b32 v8, 1, v0\nv_and_b32 v9, 1, v0\nv_lshlrev_b32 v9, 4, v9\nv_lshlrev_b32 v10, 13, v8\nv_add_u32 v10, v10, v9\nv_lshlrev_b32 v11, 11, v8\nv_add_u32 v11, v11, v9')
    A(f's_lshl_b32 s{sT2}, s{sWAVE}, 10')
    for m in range(3):
        srd(A,sT,36+2*m,8388608)
        for w in range(4):
            A(f's_add_u32 s{sT1}, s{sT0}, {w*256*8192}\ns_add_u32 m0, s{sT2}, {w*24576+m*8192}\ns_nop 0')
            A(f'buffer_load_dwordx4 v10, {sr(sT,4)}, s{sT1} offen lds')
    srd(A,sT,42,8388608)
    A(f's_lshr_b32 s{sT1}, s{sWAVE}, 1\ns_lshl_b32 s{sT0}, s{sXC}, 2\ns_add_u32 s{sT0}, s{sT0}, s{sT1}\ns_lshl_b32 s{sT0}, s{sT0}, 18')
    A(f's_lshl_b32 s{sT1}, s{sR}, 6\ns_add_u32 s{sT0}, s{sT0}, s{sT1}\ns_and_b32 s{sT1}, s{sWAVE}, 1\ns_lshl_b32 s{sT1}, s{sT1}, 5\ns_add_u32 s{sT0}, s{sT0}, s{sT1}')
    A(f's_lshl_b32 s{sT2}, s{sWAVE}, 12')
    for eb in range(4):
        A(f's_add_u32 s{sT1}, s{sT0}, {eb*65536}\ns_add_u32 m0, s{sT2}, {98304+eb*1024}\ns_nop 0')
        A(f'buffer_load_dwordx4 v11, {sr(sT,4)}, s{sT1} offen lds')
    A('L_WD:')
    return

def prologue2(A,xf):
    A('s_waitcnt vmcnt(0)\ns_barrier')
    xf(A)
    A(f's_lshr_b32 s{sT3}, s{sWAVE}, 2\ns_cmp_eq_u32 s{sT3}, 1\ns_cbranch_scc1 L_TRD')
    A(f'v_lshrrev_b32 v8, 4, v0\nv_lshlrev_b32 v8, 5, v8\nv_bfe_u32 v9, v0, 2, 2\nv_add_u32 v8, v8, v9\nv_lshlrev_b32 v8, 5, v8\nv_and_b32 v9, 3, v0\nv_lshlrev_b32 v9, 3, v9\nv_add_u32 v8, v8, v9')
    A(f's_mul_i32 s{sT0}, s{sW}, 24576\nv_add_u32 v9, s{sT0}, v8')
    for m in range(3):
        for t in range(8):
            b=vWF+(m*8+t)*4
            off=m*8192+(t>>2)*4096+(t&3)*256
            A(f'ds_read_b64_tr_b16 {vr(b,2)}, v9 offset:{off}\nds_read_b64_tr_b16 {vr(b+2,2)}, v9 offset:{off+128}')
        A('s_waitcnt lgkmcnt(0)')
    A(f's_cmp_lg_u32 s{sT3}, 0\ns_cbranch_scc1 L_TRD')
    A(f'v_lshrrev_b32 v8, 4, v0\nv_lshlrev_b32 v8, 3, v8\nv_bfe_u32 v9, v0, 2, 2\nv_add_u32 v8, v8, v9\nv_lshlrev_b32 v8, 5, v8\nv_and_b32 v9, 3, v0\nv_lshlrev_b32 v9, 3, v9\nv_add_u32 v8, v8, v9')
    A(f's_lshl_b32 s{sT1}, s{sW}, 13\ns_add_u32 s{sT1}, s{sT1}, 98304\nv_add_u32 v10, s{sT1}, v8')
    for t in range(4):
        for ct in range(2):
            b=vWG+(t*2+ct)*4
            A(f'ds_read_b64_tr_b16 {vr(b,2)}, v10 offset:{ct*4096+t*1024}\nds_read_b64_tr_b16 {vr(b+2,2)}, v10 offset:{ct*4096+t*1024+128}')
    A('s_waitcnt lgkmcnt(0)')
    A('L_TRD:')
    A('s_barrier')
    A(f's_cmp_lg_u32 s{sT3}, 0\ns_cbranch_scc1 L_GD')
    A(f's_lshl_b32 s{sT1}, s{sW}, 13\ns_add_u32 s{sT1}, s{sT1}, {L_G}\nv_add_u32 v10, s{sT1}, v1')
    for i in range(8): A(f'ds_write_b128 v10, {vr(vWG+4*i,4)} offset:{1024*i}')
    A(f'v_mov_b32 v8, 0\nv_lshlrev_b32 v9, 2, v0\nv_add_u32 v9, {L_FL}, v9\nds_write_b32 v9, v8')
    A('L_GD:')
    A('s_waitcnt vmcnt(0) lgkmcnt(0)\ns_barrier')

def bi_calc(A,dst,dreg,page):
    A(f's_lshr_b32 s72, s{sNUMA}, {8*page}\ns_and_b32 s72, s72, 0xff')
    A(f's_lshr_b32 s73, s72, s{dreg}\ns_and_b32 s73, s73, 1')
    A(f's_xor_b32 s74, s72, 0xff\ns_cmp_eq_u32 s73, 1\ns_cselect_b32 s74, s72, s74')
    A(f's_lshl_b32 s75, 1, s{dreg}\ns_sub_u32 s75, s75, 1\ns_and_b32 s74, s74, s75\ns_bcnt1_i32_b32 s74, s74')
    A(f's_and_b32 s{dst}, s74, 1\ns_lshl_b32 s73, s73, 1\ns_or_b32 s{dst}, s{dst}, s73\ns_lshr_b32 s74, s74, 1\ns_lshl_b32 s74, s74, 2\ns_or_b32 s{dst}, s{dst}, s74\ns_lshl_b32 s{dst}, s{dst}, 12')
```

```python
from g7_pro import *
from g6_bk import wave_sum
import g8_mlp
def gen_gate(A):
    A(f's_cmp_lt_u32 s{sWAVE}, 8\ns_cbranch_scc1 L_GT_SKIP')
    A('v_lshlrev_b32 v2, 5, v0')
    A(f's_lshl_b32 s{sT0}, s2, 14\ns_lshl_b32 s{sT1}, s{sW}, 12\ns_add_u32 s{sT0}, s{sT0}, s{sT1}')
    for rr in range(2):
        for hh in range(2): A(f'buffer_load_dwordx4 {vr(16+8*rr+4*hh,4)}, v2, {sr(sX,4)}, s{sT0} offen offset:{2048*rr+16*hh}')
    srd(A,sT,56,2048)
    for hh in range(2): A(f'buffer_load_dwordx4 {vr(32+4*hh,4)}, v2, {sr(sT,4)}, 0 offen offset:{16*hh}')
    srd(A,sT,48,2048)
    for hh in range(2): A(f'buffer_load_dwordx4 {vr(40+4*hh,4)}, v2, {sr(sT,4)}, 0 offen offset:{16*hh}')
    for i in range(4): A(f'v_mov_b32 v{8+i}, 0')
    A('s_waitcnt vmcnt(0)')
    A(f's_mul_i32 s{sT0}, s{sW}, {2*XSROW}\ns_add_u32 s{sT0}, s{sT0}, {L_XS}\nv_add_u32 v3, s{sT0}, v2')
    for rr in range(2):
        for hh in range(2): A(f'ds_write_b128 v3, {vr(16+8*rr+4*hh,4)} offset:{XSROW*rr+16*hh}')
    for d in range(8):
        A(f'v_lshlrev_b32 v48, 16, v{32+d}\nv_and_b32 v49, 0xffff0000, v{32+d}\nv_lshlrev_b32 v50, 16, v{40+d}\nv_and_b32 v51, 0xffff0000, v{40+d}')
        for rr in range(2):
            A(f'v_lshlrev_b32 v52, 16, v{16+8*rr+d}\nv_and_b32 v53, 0xffff0000, v{16+8*rr+d}')
            A(f'v_fmac_f32 v{8+rr}, v52, v48\nv_fmac_f32 v{10+rr}, v52, v50\nv_fmac_f32 v{8+rr}, v53, v49\nv_fmac_f32 v{10+rr}, v53, v51')
    wave_sum(A,[8,9,10,11],12)
    A('v_cvt_pk_bf16_f32 v12, v8, v9\nv_cvt_pk_bf16_f32 v13, v10, v11\nv_lshlrev_b32 v8, 16, v12\nv_and_b32 v9, 0xffff0000, v12\nv_lshlrev_b32 v10, 16, v13\nv_and_b32 v11, 0xffff0000, v13')
    for r in (8,9):
        A(f'v_mul_f32 v{r}, 0xbfb8aa3b, v{r}\nv_exp_f32 v{r}, v{r}\ns_nop 0\nv_add_f32 v{r}, 1.0, v{r}\nv_rcp_f32 v{r}, v{r}\ns_nop 0')
    A('v_cvt_pk_bf16_f32 v12, v8, v9\nv_lshlrev_b32 v8, 16, v12\nv_and_b32 v9, 0xffff0000, v12')
    A(f's_lshl_b32 s{sT0}, s2, 5\ns_lshl_b32 s{sT1}, s{sW}, 3\ns_add_u32 s{sT0}, s{sT0}, s{sT1}\ns_add_u32 s{sT0}, s{sT0}, {GR}\ns_add_u32 s{sT1}, s{sT0}, 8192')
    A(f's_mov_b64 exec, 1\nv_mov_b32 v12, 0\nbuffer_store_dwordx2 v[8:9], v12, {WS}, s{sT0} offen sc1\nbuffer_store_dwordx2 v[10:11], v12, {WS}, s{sT1} offen sc1\ns_mov_b64 exec, -1')
    A('s_waitcnt lgkmcnt(0)')
    A('L_GT_SKIP:')
def gen_xf(A):
    A(f's_cmp_lt_u32 s{sWAVE}, 8\ns_cbranch_scc1 L_XF_SKIP')
    A('v_lshrrev_b32 v2, 3, v0\nv_and_b32 v3, 7, v0')
    A(f'v_mul_u32_u24 v4, {XSROW}, v3\nv_lshlrev_b32 v5, 4, v2\nv_add_u32 v4, v4, v5')
    A(f's_lshl_b32 s{sT0}, s{sW}, 9\ns_add_u32 s{sT0}, s{sT0}, {L_XS}\nv_add_u32 v4, s{sT0}, v4')
    for q in range(4): A(f'ds_read_b128 {vr(16+4*q,4)}, v4 offset:{128*q}')
    A('v_lshlrev_b32 v5, 8, v2\nv_lshlrev_b32 v6, 4, v3\nv_add_u32 v5, v5, v6')
    A(f's_lshr_b32 s{sT0}, s2, 1\ns_lshl_b32 s{sT0}, s{sT0}, 15\ns_and_b32 s{sT1}, s2, 1\ns_lshl_b32 s{sT1}, s{sT1}, 7\ns_add_u32 s{sT0}, s{sT0}, s{sT1}\ns_lshl_b32 s{sT1}, s{sW}, 13\ns_add_u32 s{sT0}, s{sT0}, s{sT1}\ns_add_u32 s{sT0}, s{sT0}, {XF}\ns_add_u32 s{sT1}, s{sT0}, 4096')
    A('s_waitcnt lgkmcnt(0)')
    for q in range(4): A(f'buffer_store_dwordx4 {vr(16+4*q,4)}, v5, {WS}, s{sT0 if q<2 else sT1} offen offset:{2048*(q&1)} sc1')
    A('L_XF_SKIP:')
def gen_fgflag(A):
    A(f's_cmp_lg_u32 s{sWAVE}, 8\ns_cbranch_scc1 L_FGS')
    A(f's_lshl_b32 s{sT0}, s2, 2\ns_add_u32 s{sT0}, s{sT0}, {FLG+FGo}\ns_mov_b64 exec, 1\nv_mov_b32 v8, 100\nv_mov_b32 v9, 0\nbuffer_store_dword v8, v9, {WS}, s{sT0} offen sc1\ns_mov_b64 exec, -1')
    A('L_FGS:')


def mk_bst(A,P,tag,n):
    on=P.get('bstamps')
    def init():
        if on:
            for k in range(32,62): A(f's_mov_b32 s{k}, 0')
    def st(k):
        if on: A(f's_memtime s[{32+2*k}:{33+2*k}]\ns_waitcnt lgkmcnt(0)')
    def acc():
        if on:
            for k in range(n-1): A(f's_sub_u32 s{sT0}, s{32+2*(k+1)}, s{32+2*k}\ns_add_u32 s{52+k}, s{52+k}, s{sT0}')
    def dump(vt):
        if on:
            A('s_waitcnt vmcnt(0) lgkmcnt(0)')
            A(f's_lshl_b32 s{sT0}, s{sXC}, 4\ns_add_u32 s{sT0}, s{sT0}, s{sRL}\ns_lshl_b32 s{sT0}, s{sT0}, 4\ns_add_u32 s{sT0}, s{sT0}, s{sWAVE}\ns_lshl_b32 s{sT0}, s{sT0}, 6\ns_add_u32 s{sT0}, s{sT0}, {DBGW+0x300000}')
            A('s_mov_b64 exec, 1\nv_mov_b32 v0, 0')
            for k in range(12): A(f'v_mov_b32 v{vt+k}, s{52+min(k,9)}')
            for k in range(3): A(f'buffer_store_dwordx4 {vr(vt+4*k,4)}, v0, {WS}, s{sT0} offen offset:{16*k}')
            A('s_mov_b64 exec, -1')
    return init,st,acc,dump

def gen_xp(A,P):
    vL16=1; vFL=3; vSo=4; vT0=5; vT1=6; vFQ=7
    vA=16; vX=136
    sXb=78; sSt=79; sPn=80; sXr=81; sXw=82; sFl=83; sCEXP=84; sU=85; sTC=86; sXb2=87; sNH=88
    w=sW
    A('L_XPW0:')
    binit,bst,bacc,bdump=mk_bst(A,P,'X',6)
    binit()
    A(f's_lshr_b32 s{sNH}, s{sWAVE}, 2')
    A(f's_lshl_b32 s{sT0}, s{sWAVE}, 2\ns_add_u32 s{sT0}, s{sT0}, {L_FL}\nv_mov_b32 v{vFL}, s{sT0}')
    A(f'v_and_b32 v{vT0}, 15, v0\nv_lshrrev_b32 v{vT1}, 4, v0\nv_lshlrev_b32 v{vSo}, 4, v{vT0}\nv_and_b32 v8, 1, v{vT1}\nv_lshlrev_b32 v8, 3, v8\nv_add_u32 v{vSo}, v{vSo}, v8\nv_lshrrev_b32 v8, 1, v{vT1}\nv_lshlrev_b32 v8, 8, v8\nv_add_u32 v{vSo}, v{vSo}, v8')
    A(f's_lshl_b32 s{sSt}, s{sXC}, 2\ns_lshr_b32 s{sT0}, s{sRL}, 2\ns_add_u32 s{sSt}, s{sSt}, s{sT0}\ns_lshl_b32 s{sSt}, s{sSt}, 13\ns_and_b32 s{sT0}, s{sRL}, 3\ns_lshl_b32 s{sT0}, s{sT0}, 10\ns_add_u32 s{sSt}, s{sSt}, s{sT0}\ns_lshl_b32 s{sT0}, s{sNH}, 9\ns_add_u32 s{sSt}, s{sSt}, s{sT0}\ns_lshl_b32 s{sT0}, s{w}, 24\ns_add_u32 s{sSt}, s{sSt}, s{sT0}\ns_add_u32 s{sSt}, s{sSt}, {QX}')
    A(f's_mul_i32 s{sFl}, s{sXC}, 384\ns_lshl_b32 s{sT0}, s{w}, 7\ns_add_u32 s{sFl}, s{sFl}, s{sT0}\ns_lshl_b32 s{sT0}, s{sRL}, 3\ns_add_u32 s{sFl}, s{sFl}, s{sT0}\ns_lshl_b32 s{sT0}, s{sNH}, 2\ns_add_u32 s{sFl}, s{sFl}, s{sT0}\ns_add_u32 s{sFl}, s{sFl}, {FLG+F1o}')
    A(f's_mul_i32 s{sT0}, s{sNH}, 24576\ns_add_u32 s{sT0}, s{sT0}, {L_XR}\ns_mul_i32 s{sXw}, s{w}, 6144\ns_add_u32 s{sXw}, s{sXw}, s{sT0}\ns_lshl_b32 s{sXr}, s{w}, 10\ns_add_u32 s{sXr}, s{sXr}, s{sT0}')
    A(f's_lshl_b32 s{sXb2}, s{w}, 13\ns_lshl_b32 s{sT0}, s{sNH}, 12\ns_add_u32 s{sXb2}, s{sXb2}, s{sT0}\ns_add_u32 s{sXb}, s{sXb2}, {XF}\ns_add_u32 s{sXb2}, s{sXb2}, {L_XB}')
    A(f's_lshl_b32 s{sT0}, s{w}, 13\ns_add_u32 s{sT0}, s{sT0}, {L_XB}\nv_add_u32 v2, s{sT0}, v{vL16}')
    A(f's_mov_b32 s{sPn}, s{sRL}\ns_mov_b32 s{sCEXP}, 0x3e0293ee\ns_mov_b32 s{sTC}, 0')
    def xdma(sbuf):
        A(f's_add_u32 m0, s{sXb2}, s{sbuf}\ns_nop 0')
        for t in range(4): A(f'buffer_load_dwordx4 v{vL16}, {WS}, s{sXb} offen offset:{1024*t} lds')
        A(f's_add_u32 s{sXb}, s{sXb}, 32768')
    def fgwait(tag,sblk):
        A(f'v_lshlrev_b32 v8, 2, v0\ns_lshl_b32 s{sT0}, s{sblk}, 8\ns_add_u32 s{sT0}, s{sT0}, {FLG+FGo}')
        A(f'L_{tag}:')
        A(f'buffer_load_dword v9, v8, {WS}, s{sT0} offen sc1\ns_waitcnt vmcnt(0)\nv_cmp_eq_u32 vcc, 0, v9\ns_cbranch_vccz L_{tag}K')
        A('s_sleep 1')
        spin(A,f'L_{tag}')
        A(f'L_{tag}K:')
    A(f's_xor_b32 s{sT0}, s{sWAVE}, 4\ns_lshl_b32 s{sT0}, s{sT0}, 2\ns_add_u32 s{sT0}, s{sT0}, {L_FL+F_XD}\nv_mov_b32 v{vFQ}, s{sT0}')
    A(f'v_add_u32 v12, s{sXw}, v{vL16}\nv_add_u32 v13, s{sXr}, v{vL16}\ns_lshl_b32 s{sT2}, s{sNH}, 4\ns_add_u32 s{sT2}, s{sT2}, {L_FL}\nv_mov_b32 v14, s{sT2}')
    fgwait('FG0',sTC)
    xdma(sTC)
    A('L_XP:')
    A(f'v_mov_b32 v{vT1}, {L_FL+F_PGO}\nds_read_b128 v[8:11], v{vT1}\ns_waitcnt lgkmcnt(0)\nv_min3_u32 v8, v8, v9, v10\nv_min_u32 v8, v8, v11\nv_readfirstlane_b32 s{sT1}, v8')
    A(f's_cmp_gt_u32 s{sT1}, s{sPn}\ns_cbranch_scc1 L_PT')
    A(f's_cmp_ge_u32 s{sTC}, 64\ns_cbranch_scc1 L_XPE')
    A(f's_add_u32 s{sT1}, s{sT1}, {P["AHEAD"]}\ns_cmp_lt_u32 s{sTC}, s{sT1}\ns_cbranch_scc1 L_XPG\ns_branch L_XPS')
    A('L_XPE:')
    A(f's_cmp_ge_u32 s{sPn}, 64\ns_cbranch_scc1 L_XP_DONE')
    A('L_XPS:')
    A('s_sleep 2')
    spin(A,'L_XP')
    A('L_XPG:')
    if P.get('bbranch',True):
        A(f's_cmp_lg_u32 s{sTC}, {P["B2AT"]}\ns_cbranch_scc1 L_NB2')
        g8_mlp.phase_b2(A,76,77,sNH,(50,52))
        g8_mlp.sync8(A,'MSe',6)
        A(f's_branch L_REDMA')
        A('L_NB2:')
        A(f's_cmp_lg_u32 s{sTC}, {P["B3AT"]}\ns_cbranch_scc1 L_NB3')
        g8_mlp.phase_b3(A,54)
        A('L_REDMA:')
        A(f's_sub_u32 s{sXb}, s{sXb}, 32768\ns_mov_b32 s{sT2}, 0')
        xdma(sT2)
        A('L_NB3:')
    bst(0)
    for rt in range(2):
        A(f's_lshl_b32 s{sU}, s{sTC}, 1\ns_add_u32 s{sU}, s{sU}, {rt+1}\nv_mov_b32 v8, s{sU}\ns_waitcnt vmcnt(0)\nds_write_b32 v{vFL}, v8 offset:{F_XD}')
        if rt==0:
            A(f's_cmp_eq_u32 s{sTC}, 0\ns_cbranch_scc1 L_XPF\ns_cmp_eq_u32 s{w}, 3\ns_cbranch_scc1 L_XPF')
            A(f's_mov_b64 exec, 1\nv_mov_b32 v9, s{sTC}\nv_mov_b32 v10, 0')
            lstore(A,[f'buffer_store_dword v9, v10, {WS}, s{sFl} offen'])
            A('s_mov_b64 exec, -1')
            A('L_XPF:')
        else:
            A(f's_add_u32 s{sT2}, s{sTC}, 1\ns_and_b32 s{sT0}, s{sT2}, 15\ns_cmp_lg_u32 s{sT0}, 0\ns_cbranch_scc1 L_XPG2\ns_cmp_ge_u32 s{sT2}, 64\ns_cbranch_scc1 L_XPG2\ns_lshr_b32 s{sT2}, s{sT2}, 4')
            fgwait('FG1',sT2)
            A('L_XPG2:')
        A(f'L_XD{rt}:')
        A(f'ds_read_b32 v9, v{vFQ}\ns_waitcnt lgkmcnt(0)\nv_cmp_gt_u32 vcc, s{sU}, v9\ns_cbranch_vccz L_XD{rt}K')
        spin(A,f'L_XD{rt}')
        A(f'L_XD{rt}K:')
        for t in range(8): A(f'ds_read_b128 {vr(vX+4*t,4)}, v2 offset:{32768*rt+1024*t}')
        A(f's_mov_b32 s{sT2}, {32768*(1-rt)}')
        xdma(sT2)
        for t in range(8):
            A(f's_waitcnt lgkmcnt({7-t})')
            for m in range(3):
                acc=vr(vA+12*rt+4*m,4)
                A(f'{MF} {acc}, {F(m*8+t)}, {vr(vX+4*t,4)}, {"0" if t==0 else acc}')
    bst(1)
    A('L_XC:')
    A(f'ds_read_b128 v[8:11], v14 offset:{F_XC}\ns_waitcnt lgkmcnt(0)\nv_min3_u32 v8, v8, v9, v10\nv_min_u32 v8, v8, v11\nv_cmp_gt_u32 vcc, s{sTC}, v8\ns_cbranch_vccz L_XCK')
    spin(A,'L_XC')
    A('L_XCK:')
    A(f's_add_u32 s{sU}, s{sTC}, 1\nv_mov_b32 v15, s{sU}')
    for k in range(6): A(f'ds_write_b128 v12, {vr(vA+4*k,4)} offset:{1024*k}')
    A(f'ds_write_b32 v{vFL}, v15 offset:{F_XR}')
    bst(2)
    A(f's_cmp_eq_u32 s{w}, 3\ns_cbranch_scc1 L_XRS')
    A('L_XRP:')
    A(f'ds_read_b128 v[8:11], v14 offset:{F_XR}\ns_waitcnt lgkmcnt(0)\nv_min3_u32 v8, v8, v9, v10\nv_min_u32 v8, v8, v11\nv_cmp_gt_u32 vcc, s{sU}, v8\ns_cbranch_vccz L_XRK')
    spin(A,'L_XRP')
    A('L_XRK:')
    bst(3)
    for rt in range(2):
        for src in range(4): A(f'ds_read_b128 {vr(vX+16*rt+4*src,4)}, v13 offset:{6144*src+3072*rt}')
    A(f's_and_b32 s{sT1}, s{sTC}, 15\ns_lshl_b32 s{sT1}, s{sT1}, 18\ns_add_u32 s{sT1}, s{sT1}, s{sSt}\ns_add_u32 s{sT0}, s{sT1}, 4096')
    A('s_waitcnt lgkmcnt(0)')
    for rt in range(2):
        p=vX+16*rt
        A(f'v_pk_add_f32 {vr(p,2)}, {vr(p,2)}, {vr(p+4,2)}\nv_pk_add_f32 {vr(p+2,2)}, {vr(p+2,2)}, {vr(p+6,2)}\nv_pk_add_f32 {vr(p+8,2)}, {vr(p+8,2)}, {vr(p+12,2)}\nv_pk_add_f32 {vr(p+10,2)}, {vr(p+10,2)}, {vr(p+14,2)}')
        A(f'v_pk_add_f32 {vr(p,2)}, {vr(p,2)}, {vr(p+8,2)}\nv_pk_add_f32 {vr(p+2,2)}, {vr(p+2,2)}, {vr(p+10,2)}')
        A(f'v_cvt_pk_bf16_f32 v{8+2*rt}, v{p}, v{p+1}\nv_cvt_pk_bf16_f32 v{9+2*rt}, v{p+2}, v{p+3}')
    lstore(A,[f'buffer_store_dwordx2 v[8:9], v{vSo}, {WS}, s{sT1} offen', f'buffer_store_dwordx2 v[10:11], v{vSo}, {WS}, s{sT0} offen'])
    A(f's_waitcnt vmcnt(0)\ns_mov_b64 exec, 1\nv_mov_b32 v8, 0')
    lstore(A,[f'buffer_store_dword v15, v8, {WS}, s{sFl} offen'])
    A('s_mov_b64 exec, -1')
    A('L_XRS:')
    A(f'ds_write_b32 v{vFL}, v15 offset:{F_XC}')
    if P.get('bstamps'):
        A(f's_cmp_lg_u32 s{w}, 3\ns_cbranch_scc1 L_XB3'); bst(3); A('L_XB3:')
    bst(4); bst(5); bacc()
    P['rt'](10,sTC,(8,9))
    A(f's_add_u32 s{sTC}, s{sTC}, 1\ns_branch L_XP')
    A('L_PT:')
    A('s_waitcnt vmcnt(0)')
    A(f's_mul_i32 s{sT0}, s{sXC}, 384\ns_lshl_b32 s{sT1}, s{w}, 5\ns_add_u32 s{sT0}, s{sT0}, s{sT1}\ns_add_u32 s{sT0}, s{sT0}, {FLG+F1o}\nv_and_b32 v8, 7, v0\nv_lshlrev_b32 v8, 2, v8\nv_and_b32 v9, 8, v0\nv_lshlrev_b32 v9, 4, v9\nv_add_u32 v8, v8, v9')
    A('L_PQ:')
    A(f'buffer_load_dword v9, v8, {WS}, s{sT0} offen sc1\ns_waitcnt vmcnt(0)\nv_cmp_ge_u32 vcc, s{sPn}, v9\ns_cbranch_vccz L_PQK')
    spin(A,'L_PQ')
    A('L_PQK:')
    A(f's_and_b32 s{sT2}, s{sPn}, 15\ns_lshl_b32 s{sT2}, s{sT2}, 5\ns_lshl_b32 s{sT0}, s{sXC}, 2\ns_add_u32 s{sT2}, s{sT2}, s{sT0}\ns_add_u32 s{sT2}, s{sT2}, s{w}\ns_lshl_b32 s{sT3}, s{sT2}, 12\ns_add_u32 s{sT3}, s{sT3}, {PB}\ns_lshl_b32 s{sT0}, s{sNH}, 11\ns_add_u32 s{sT3}, s{sT3}, s{sT0}\ns_lshl_b32 s{sT2}, s{sT2}, 13')
    vQ=136; vK=152; kmreg=[28,32,36,8]; T0,T1,T2=16,20,24
    A(f's_lshl_b32 s{sT0}, s{sNH}, 12\ns_add_u32 s{sT0}, s{sT0}, s{sT2}\ns_add_u32 s{sT0}, s{sT0}, {QX}')
    for f in range(4): A(f'buffer_load_dwordx4 {vr(vQ+4*f,4)}, v{vL16}, {WS}, s{sT0} offen offset:{1024*f} sc1')
    A(f's_add_u32 s{sT0}, s{sT2}, {KXG}')
    for f in range(4): A(f'buffer_load_dwordx4 {vr(vK+4*f,4)}, v{vL16}, {WS}, s{sT0} offen offset:{1024*f} sc1')
    A(f's_add_u32 s{sT0}, s{sT2}, {KMG}\nv_or_b32 v{vT0}, 128, v{vL16}')
    for f in range(4): A(f'buffer_load_dwordx4 {vr(kmreg[f],4)}, v{vT0}, {WS}, s{sT0} offen offset:{1024*f} sc1')
    for i in range(4): A(f'v_mov_b32 v{T0+i}, 0')
    A(f's_mov_b64 exec, {sr(sLO,2)}')
    for i in range(4): A(f'v_mov_b32 v{T0+i}, 0xf149f2ca')
    A('s_mov_b64 exec, -1')
    A(f'v_lshrrev_b32 v15, 4, v0\nv_lshlrev_b32 v15, 2, v15\nv_and_b32 v{vT1}, 15, v0\nv_sub_u32 v{vT1}, v{vT1}, v15\nv_mov_b32 v15, 0xf149f2ca')
    A(f's_cmp_eq_u32 s{sNH}, 1\ns_cbranch_scc1 L_PT1')
    for r in range(4): A(f'v_cmp_gt_i32 vcc, {r}, v{vT1}\nv_mov_b32 v{T2+r}, v15\ns_nop 0\nv_cndmask_b32 v{T1+r}, 0, v15, vcc')
    A('s_branch L_PT2')
    A('L_PT1:')
    for r in range(4): A(f'v_cmp_gt_i32 vcc, {r}, v{vT1}\nv_mov_b32 v{T1+r}, 0\ns_nop 0\nv_cndmask_b32 v{T2+r}, 0, v15, vcc')
    A('L_PT2:')
    A('s_waitcnt vmcnt(0)')
    for f in range(4):
        A(f'{MF} {vr(T0,4)}, {vr(kmreg[f],4)}, {vr(vQ+4*f,4)}, {vr(T0,4)}')
        A(f'{MF} {vr(T1,4)}, {vr(vK+4*f,4)}, {vr(vQ+4*f,4)}, {vr(T1,4)}')
    A(f's_cmp_eq_u32 s{sNH}, 0\ns_cbranch_scc1 L_PT3')
    A(f's_add_u32 s{sT0}, s{sT2}, {KXG+4096}')
    for f in range(4): A(f'buffer_load_dwordx4 {vr(vK+4*f,4)}, v{vL16}, {WS}, s{sT0} offen offset:{1024*f} sc1')
    A('s_waitcnt vmcnt(0)')
    for f in range(4): A(f'{MF} {vr(T2,4)}, {vr(vK+4*f,4)}, {vr(vQ+4*f,4)}, {vr(T2,4)}')
    A('L_PT3:')
    A.nop(8)
    S=16; mx=8; t1=9
    A(f'v_max3_f32 v{mx}, v{S}, v{S+1}, v{S+2}\nv_max3_f32 v{t1}, v{S+3}, v{S+4}, v{S+5}\nv_max3_f32 v{mx}, v{mx}, v{S+6}, v{S+7}\nv_max3_f32 v{t1}, v{t1}, v{S+8}, v{S+9}\nv_max3_f32 v{mx}, v{mx}, v{S+10}, v{S+11}\nv_max_f32 v{mx}, v{mx}, v{t1}')
    A(f'v_mov_b32 v{t1}, v{mx}\ns_nop 1\nv_permlane32_swap_b32 v{mx}, v{t1}\ns_nop 1\nv_max_f32 v{mx}, v{mx}, v{t1}')
    A(f'v_mov_b32 v{t1}, v{mx}\ns_nop 1\nv_permlane16_swap_b32 v{mx}, v{t1}\ns_nop 1\nv_max_f32 v{mx}, v{mx}, v{t1}')
    A(f'v_mul_f32 v{mx}, s{sCEXP}, v{mx}')
    for i in range(12): A(f'v_fma_f32 v{S+i}, v{S+i}, s{sCEXP}, -v{mx}')
    for i in range(12): A(f'v_exp_f32 v{S+i}, v{S+i}')
    A('s_nop 0')
    A(f'v_add_f32 v{mx}, v{S}, v{S+1}')
    for i in range(2,12): A(f'v_add_f32 v{mx}, v{mx}, v{S+i}')
    A(f'v_mov_b32 v{t1}, v{mx}\ns_nop 1\nv_permlane32_swap_b32 v{mx}, v{t1}\ns_nop 1\nv_add_f32 v{mx}, v{mx}, v{t1}')
    A(f'v_mov_b32 v{t1}, v{mx}\ns_nop 1\nv_permlane16_swap_b32 v{mx}, v{t1}\ns_nop 1\nv_add_f32 v{mx}, v{mx}, v{t1}')
    A(f'v_rcp_f32 v{mx}, v{mx}\ns_nop 0')
    for i in range(12): A(f'v_mul_f32 v{S+i}, v{S+i}, v{mx}')
    o=28
    A(f'v_cvt_pk_bf16_f32 v{o}, v{T1}, v{T1+1}\nv_cvt_pk_bf16_f32 v{o+1}, v{T1+2}, v{T1+3}\nv_cvt_pk_bf16_f32 v{o+2}, v{T2}, v{T2+1}\nv_cvt_pk_bf16_f32 v{o+3}, v{T2+2}, v{T2+3}')
    A(f'v_cvt_pk_bf16_f32 v{o+4}, v{T0}, v{T0+1}\nv_cvt_pk_bf16_f32 v{o+5}, v{T0+2}, v{T0+3}\nv_cvt_pk_bf16_f32 v{o+6}, v{T0}, v{T0+1}\nv_cvt_pk_bf16_f32 v{o+7}, v{T0+2}, v{T0+3}\ns_nop 1')
    A(f'v_permlane32_swap_b32 v{o+6}, v{o+4}\nv_permlane32_swap_b32 v{o+7}, v{o+5}\nv_lshrrev_b32 v8, 1, v{vL16}\ns_nop 1')
    lstore(A,[f'buffer_store_dwordx4 {vr(o,4)}, v{vL16}, {WS}, s{sT3} offen', f'buffer_store_dwordx2 {vr(o+4,2)}, v8, {WS}, s{sT3} offen offset:1024'])
    A('s_waitcnt vmcnt(0)')
    A(f's_lshl_b32 s{sT0}, s{sXC}, 2\ns_add_u32 s{sT0}, s{sT0}, s{w}\ns_lshl_b32 s{sT0}, s{sT0}, 6\ns_add_u32 s{sT0}, s{sT0}, s{sPn}\ns_lshl_b32 s{sT0}, s{sT0}, 1\ns_add_u32 s{sT0}, s{sT0}, s{sNH}\ns_lshl_b32 s{sT0}, s{sT0}, 2\ns_add_u32 s{sT0}, s{sT0}, {FLG+F2o}\ns_add_u32 s{sT1}, s{sPn}, 1')
    A(f's_mov_b64 exec, 1\nv_mov_b32 v8, s{sT1}\nv_mov_b32 v9, 0')
    lstore(A,[f'buffer_store_dword v8, v9, {WS}, s{sT0} offen'])
    A(f's_mov_b64 exec, -1\ns_add_u32 s{sPn}, s{sPn}, 16\ns_branch L_XP')
    A('L_XP_DONE:')
    bdump(16)
    if P.get('xp_tail'): P['xp_tail'](A)
    A('s_waitcnt vmcnt(0) lgkmcnt(0)\ns_endpgm')

def gen_bv(A,P):
    vL16=1; vFL=2; vFGA=3; vFGO=4; vFGS=5; vFGV=6; vOBw=7; vT0=8; vT1=9; vT2=10; vT3=11; vFINo=12; vG4=13; vF3a=14; vFDa=15
    vVX=16
    vAC=48
    vVM=80
    vFD=96
    vFX=88; vG=104
    def G4(t,ct): return vr(vG+(t*4+ct)*4,4)
    sH=78; sVWs=79; sOBs=80; sOBr=81; sFINs=82; sGs=83; sF3s=84; sFV=85; sU1=86; sU3=87; sPBs=88; sSD=89
    w=sW; i=sS
    A('L_BV:')
    binit,bst,bacc,bdump=mk_bst(A,P,'V',9)
    binit()
    A(f's_lshl_b32 s{sT0}, s{w}, 2\ns_add_u32 s{sT0}, s{sT0}, {L_FL}\nv_mov_b32 v{vFL}, s{sT0}')
    A(f'v_and_b32 v{vT0}, 15, v0\nv_lshrrev_b32 v{vT1}, 4, v0\nv_lshlrev_b32 v{vOBw}, 17, v{vT1}\nv_lshlrev_b32 v{vT2}, 4, v{vT0}\nv_add_u32 v{vOBw}, v{vOBw}, v{vT2}')
    A(f'v_lshlrev_b32 v{vFINo}, 11, v{vT1}\nv_and_b32 v{vT0}, 7, v0\nv_lshlrev_b32 v{vT2}, 1, v{vT0}\nv_add_u32 v{vFINo}, v{vFINo}, v{vT2}\nv_lshlrev_b32 v{vG4}, 2, v{vT1}\nv_lshlrev_b32 v{vF3a}, 11, v0')
    A(f'v_lshrrev_b32 v{vT1}, 3, v0\nv_lshlrev_b32 v{vFDa}, 10, v{vT1}\nv_lshlrev_b32 v{vT0}, 4, v{vT0}\nv_add_u32 v{vFDa}, v{vFDa}, v{vT0}\ns_lshl_b32 s{sT0}, s{w}, 8\nv_add_u32 v{vFDa}, s{sT0}, v{vFDa}')
    A(f'v_mov_b32 v{vFGA}, {FLG}\nv_mov_b32 v{vFGO}, 0xfffffc00\nv_mov_b32 v{vFGS}, 0\nv_lshlrev_b32 v{vT0}, 2, v0')
    A(f's_mul_i32 s{sT0}, s{sXC}, 384\ns_lshl_b32 s{sT1}, s{w}, 5\ns_add_u32 s{sT0}, s{sT0}, s{sT1}\ns_add_u32 s{sT0}, s{sT0}, {FLG+F1o+256}\ns_mov_b64 exec, 0xff\nv_add_u32 v{vFGA}, s{sT0}, v{vT0}\nv_mov_b32 v{vFGO}, 5')
    A(f's_lshl_b32 s{sT0}, s{sXC}, 8\ns_lshl_b32 s{sT1}, s{w}, 6\ns_add_u32 s{sT0}, s{sT0}, s{sT1}\ns_add_u32 s{sT0}, s{sT0}, {FLG+FKo-32}\ns_mov_b64 exec, 0xffff00\nv_add_u32 v{vFGA}, s{sT0}, v{vT0}\nv_mov_b32 v{vFGO}, 0')
    A(f's_lshl_b32 s{sT0}, s{sXC}, 11\ns_lshl_b32 s{sT1}, s{w}, 9\ns_add_u32 s{sT0}, s{sT0}, s{sT1}\ns_add_u32 s{sT0}, s{sT0}, {FLG+F2o-96-56}\ns_mov_b64 exec, 0x3000000\nv_add_u32 v{vFGA}, s{sT0}, v{vT0}\nv_mov_b32 v{vFGO}, -2\nv_mov_b32 v{vFGS}, 8')
    A(f's_lshr_b32 s{sT0}, s{sXC}, 1\ns_lshl_b32 s{sT0}, s{sT0}, 2\ns_add_u32 s{sT0}, s{sT0}, {FLG+FGo-144}\ns_mov_b64 exec, 0x4000000\nv_mov_b32 v{vFGA}, s{sT0}\nv_mov_b32 v{vFGO}, -4\nv_mov_b32 v{vFGS}, 16')
    A(f's_lshl_b32 s{sT0}, s{sXC}, 4\ns_add_u32 s{sT0}, s{sT0}, s{sRL}\ns_lshl_b32 s{sT0}, s{sT0}, 7\ns_lshr_b32 s{sT1}, s{sXC}, 2\ns_lshl_b32 s{sT1}, s{sT1}, 3\ns_add_u32 s{sT0}, s{sT0}, s{sT1}\ns_add_u32 s{sT0}, s{sT0}, {FLG+F3o}')
    A(f's_mov_b32 exec_lo, 0\ns_mov_b32 exec_hi, 0xffff\nv_bfe_u32 v{vT1}, v0, 1, 3\nv_lshlrev_b32 v{vT1}, 4, v{vT1}\nv_and_b32 v{vT2}, 1, v0\nv_lshlrev_b32 v{vT2}, 2, v{vT2}\nv_add_u32 v{vT1}, v{vT1}, v{vT2}\nv_add_u32 v{vFGA}, s{sT0}, v{vT1}\nv_mov_b32 v{vFGO}, -4\ns_mov_b64 exec, -1')
    A(f's_lshl_b32 s{sH}, s{sXC}, 2\ns_add_u32 s{sH}, s{sH}, s{w}\ns_lshl_b32 s{sPBs}, s{sH}, 12\ns_add_u32 s{sPBs}, s{sPBs}, {PB}\ns_lshl_b32 s{sH}, s{sH}, 13')
    A(f's_lshl_b32 s{sVWs}, s{sXC}, 4\ns_add_u32 s{sVWs}, s{sVWs}, s{sRL}\ns_lshl_b32 s{sOBr}, s{sVWs}, 13\ns_add_u32 s{sOBr}, s{sOBr}, {OB}\ns_lshl_b32 s{sVWs}, s{sVWs}, 2\ns_add_u32 s{sVWs}, s{sVWs}, s{w}\ns_lshl_b32 s{sFV}, s{sVWs}, 2\ns_add_u32 s{sFV}, s{sFV}, {FLG+FVo}\ns_lshl_b32 s{sVWs}, s{sVWs}, 12\ns_add_u32 s{sVWs}, s{sVWs}, {VWG}')
    A(f's_lshr_b32 s{sT0}, s{w}, 1\ns_lshl_b32 s{sT0}, s{sT0}, 6\ns_add_u32 s{sT0}, s{sT0}, s{sRL}\ns_lshl_b32 s{sOBs}, s{sT0}, 13\ns_lshl_b32 s{sF3s}, s{sT0}, 7\ns_lshl_b32 s{sT1}, s{sXC}, 10\ns_add_u32 s{sOBs}, s{sOBs}, s{sT1}\ns_and_b32 s{sT1}, s{w}, 1\ns_lshl_b32 s{sT1}, s{sT1}, 9\ns_add_u32 s{sOBs}, s{sOBs}, s{sT1}\ns_add_u32 s{sOBs}, s{sOBs}, {OB}')
    A(f's_lshl_b32 s{sT1}, s{sXC}, 4\ns_add_u32 s{sF3s}, s{sF3s}, s{sT1}\ns_lshl_b32 s{sT1}, s{w}, 2\ns_add_u32 s{sF3s}, s{sF3s}, s{sT1}\ns_add_u32 s{sF3s}, s{sF3s}, {FLG+F3o}')
    A(f's_lshl_b32 s{sFINs}, s{sXC}, 13\ns_lshl_b32 s{sT0}, s{sRL}, 7\ns_add_u32 s{sFINs}, s{sFINs}, s{sT0}\ns_lshl_b32 s{sT0}, s{w}, 5\ns_add_u32 s{sFINs}, s{sFINs}, s{sT0}')
    A(f's_lshl_b32 s{sGs}, s{sXC}, 4\ns_add_u32 s{sGs}, s{sGs}, {GR}')
    A(f's_mov_b32 s{i}, -4')
    A(f'buffer_load_dword v{vFGV}, v{vFGA}, {WS}, 0 offen sc1\ns_waitcnt vmcnt(0)')
    def rng(lo,hi,lab):
        if lo is not None: A(f's_cmp_lt_i32 s{i}, {lo}\ns_cbranch_scc1 {lab}')
        if hi is not None: A(f's_cmp_gt_i32 s{i}, {hi}\ns_cbranch_scc1 {lab}')
    def wv(n):
        l=A.newlabel('WV')
        A(f's_waitcnt vmcnt({n})\ns_cmp_eq_u32 s{sSD}, 1\ns_cbranch_scc1 {l}\ns_waitcnt vmcnt(0)\n{l}:')
    pb=vVX+16
    A('L_BV_LOOP:')
    bst(0)
    A(f's_mov_b32 s{sSD}, 0\ns_cmp_lt_i32 s{i}, 5\ns_cbranch_scc1 L_BVS\ns_cmp_gt_i32 s{i}, 59\ns_cbranch_scc1 L_BVS\ns_mov_b32 s{sSD}, 1\nL_BVS:')
    A(f'v_add_u32 v{vT0}, s{i}, v{vFGO}\nv_min_i32 v{vT0}, 64, v{vT0}')
    A(f's_cmp_le_i32 s{i}, 66\ns_cbranch_scc1 L_BVF0\ns_mov_b64 exec, 0x3000000\nv_mov_b32 v{vT0}, 0\ns_mov_b64 exec, -1')
    A('L_BVF0:')
    A('s_waitcnt vmcnt(2)')
    A(f'v_cmp_lt_i32 vcc, v{vFGV}, v{vT0}\ns_cbranch_vccz L_BVK')
    A('s_waitcnt vmcnt(0)')
    rng(4,67,'L_BVF2')
    A(f's_sub_u32 s{sT0}, s{i}, 3\ns_mov_b64 exec, 0xf\nv_mov_b32 v{vT1}, s{sT0}\nbuffer_store_dword v{vT1}, v{vF3a}, {WS}, s{sF3s} offen sc1\ns_mov_b64 exec, -1')
    A('L_BVF2:')
    A(f'buffer_load_dword v{vFGV}, v{vFGA}, {WS}, 0 offen sc1\ns_waitcnt vmcnt(0)')
    A(f'v_cmp_lt_i32 vcc, v{vFGV}, v{vT0}\ns_cbranch_vccz L_BVK')
    A('s_sleep 1')
    spin(A,'L_BVF2')
    A('L_BVK:')
    bst(1)
    A(f's_max_i32 s{sT0}, s{i}, 0\ns_min_i32 s{sT0}, s{sT0}, 64\nv_mov_b32 v{vT1}, s{sT0}\nds_write_b32 v{vFL}, v{vT1} offset:{F_PGO}')
    rng(None,59,'L_BV1')
    A(f's_add_u32 s{sT0}, s{i}, 4\ns_and_b32 s{sT0}, s{sT0}, 15\ns_lshl_b32 s{sT0}, s{sT0}, 18\ns_add_u32 s{sT0}, s{sT0}, s{sH}\ns_add_u32 s{sT0}, s{sT0}, {VXG}\ns_add_u32 s{sT1}, s{sT0}, 4096')
    for k in range(8): A(f'buffer_load_dwordx4 {vr(vVX+4*k,4)}, v{vL16}, {WS}, s{sT0 if k<4 else sT1} offen offset:{1024*(k&3)} sc1')
    A('L_BV1:')
    rng(3,66,'L_BV3')
    A(f's_sub_u32 s{sT0}, s{i}, 3\ns_and_b32 s{sT0}, s{sT0}, 15\ns_lshl_b32 s{sT0}, s{sT0}, 18\ns_add_u32 s{sT0}, s{sT0}, s{sH}\ns_add_u32 s{sT0}, s{sT0}, {KMG+4096}')
    A(f'buffer_load_dwordx4 {vr(vVM,4)}, v{vL16}, {WS}, s{sT0} offen sc1\nbuffer_load_dwordx4 {vr(vVM+4,4)}, v{vL16}, {WS}, s{sT0} offen offset:1024 sc1')
    A('L_BV3:')
    rng(5,None,'L_BV2')
    A(f's_sub_u32 s{sT1}, s{i}, 5\ns_and_b32 s{sT0}, s{sT1}, 15\ns_lshl_b32 s{sT0}, s{sT0}, 20\ns_add_u32 s{sT0}, s{sT0}, s{sOBr}')
    A(f'buffer_load_dwordx4 {vr(vFD,4)}, v{vFDa}, {WS}, s{sT0} offen sc1\nbuffer_load_dwordx4 {vr(vFD+4,4)}, v{vFDa}, {WS}, s{sT0} offen offset:128 sc1')
    A(f's_lshl_b32 s{sT0}, s{sT1}, 16\ns_add_u32 s{sU3}, s{sT0}, s{sFINs}\nbuffer_load_ushort v{vFX}, v{vFINo}, {sr(sX,4)}, s{sU3} offen\nbuffer_load_ushort v{vFX+1}, v{vFINo}, {sr(sX,4)}, s{sU3} offen offset:16')
    A(f's_lshl_b32 s{sT0}, s{sT1}, 7\ns_add_u32 s{sT0}, s{sT0}, s{sGs}\nbuffer_load_dword v{vFX+2}, v{vG4}, {WS}, s{sT0} offen sc1')
    A('L_BV2:')
    wv(7)
    bst(2)
    rng(4,67,'L_BVF3')
    A(f's_sub_u32 s{sT0}, s{i}, 3\ns_mov_b64 exec, 0xf\nv_mov_b32 v{vT1}, s{sT0}\nbuffer_store_dword v{vT1}, v{vF3a}, {WS}, s{sF3s} offen sc1\ns_mov_b64 exec, -1')
    A('L_BVF3:')
    rng(None,59,'L_BV4a')
    for t in range(4):
        for kt in range(2):
            for ct in range(4):
                acc=vr(vAC+4*(4*kt+ct),4)
                A(f'{MF} {acc}, {vr(vVX+16*kt+4*t,4)}, {G4(t,ct)}, {"0" if t==0 else acc}')
    A('L_BV4a:')
    A(f's_sub_u32 s{sU1}, s{i}, 3')
    rng(3,66,'L_BV4b')
    A(f's_and_b32 s{sT0}, s{sU1}, 15\ns_lshl_b32 s{sT0}, s{sT0}, 17\ns_add_u32 s{sT0}, s{sT0}, s{sPBs}\nv_lshrrev_b32 v{vT0}, 1, v{vL16}')
    for rt in range(2):
        A(f'buffer_load_dwordx4 {vr(pb+8*rt,4)}, v{vL16}, {WS}, s{sT0} offen offset:{2048*rt} sc1\nbuffer_load_dwordx2 {vr(pb+8*rt+4,2)}, v{vT0}, {WS}, s{sT0} offen offset:{2048*rt+1024} sc1\nv_mov_b32 v{pb+8*rt+6}, 0\nv_mov_b32 v{pb+8*rt+7}, 0')
    A('L_BV4b:')
    rng(None,59,'L_BV4')
    A(f's_add_u32 s{sT0}, s{i}, 4\ns_and_b32 s{sT0}, s{sT0}, {VWRING-1}\ns_lshl_b32 s{sT0}, s{sT0}, 21\ns_add_u32 s{sT0}, s{sT0}, s{sVWs}')
    A.nop(4)
    for ct in range(4):
        for kt in range(2):
            a=vAC+4*(4*kt+ct)
            A(f'v_cvt_pk_bf16_f32 v{vVX+4*ct+2*kt}, v{a}, v{a+1}\nv_cvt_pk_bf16_f32 v{vVX+4*ct+2*kt+1}, v{a+2}, v{a+3}')
    lstore(A,[f'buffer_store_dwordx4 {vr(vVX+4*ct,4)}, v{vL16}, {WS}, s{sT0} offen offset:{1024*ct}' for ct in range(4)])
    A('L_BV4:')
    rng(3,66,'L_BV4c')
    A(f's_and_b32 s{sT0}, s{sU1}, {VWRING-1}\ns_lshl_b32 s{sT0}, s{sT0}, 21\ns_add_u32 s{sT0}, s{sT0}, s{sVWs}')
    for ct in range(4): A(f'buffer_load_dwordx4 {vr(vVX+4*ct,4)}, v{vL16}, {WS}, s{sT0} offen offset:{1024*ct} sc1')
    A('L_BV4c:')
    bst(3)
    wv(18)
    rng(3,66,'L_BV5a')
    for u in range(2):
        for ct in range(4):
            lo=vAC+8*ct; hi=lo+4
            A(f'{MF} {vr(lo,4)}, {vr(vVM+4*u,4)}, {G4(u,ct)}, {"0" if u==0 else vr(lo,4)}')
            A(f'{MF} {vr(hi,4)}, {vr(vVM+4*u,4)}, {G4(u+2,ct)}, {"0" if u==0 else vr(hi,4)}')
    A('L_BV5a:')
    wv(13)
    bst(4)
    rng(5,None,'L_BV5')
    g=vFX+2
    A(f'v_sub_f32 v{vFX+3}, 1.0, v{g}\nv_cvt_pk_bf16_f32 v{vFX+3}, v{vFX+3}, v{vFX+3}\nv_lshlrev_b32 v{vFX+3}, 16, v{vFX+3}')
    for h in range(2):
        d=vFD+4*h; x=vFX+h
        A(f'v_permlane32_swap_b32 v{d}, v{d+2}\nv_permlane32_swap_b32 v{d+1}, v{d+3}\ns_nop 1\nv_add_f32 v{d}, v{d}, v{d+2}\nv_add_f32 v{d+1}, v{d+1}, v{d+3}\ns_nop 1\nv_permlane16_swap_b32 v{d}, v{d+1}\ns_nop 1\nv_add_f32 v{d}, v{d}, v{d+1}\ns_nop 1')
        A(f'v_add_f32_dpp v{d+1}, v{d}, v{d} row_ror:8 row_mask:0xf bank_mask:0xf')
        A(f'v_cvt_pk_bf16_f32 v{d+1}, v{d+1}, v{d+1}\nv_lshlrev_b32 v{d+2}, 16, v{d+1}\nv_lshlrev_b32 v{x}, 16, v{x}')
        A(f'v_mul_f32 v{d+2}, v{g}, v{d+2}\nv_mul_f32 v{d+3}, v{vFX+3}, v{x}\nv_cvt_pk_bf16_f32 v{d+2}, v{d+2}, v{d+3}\nv_lshlrev_b32 v{d+3}, 16, v{d+2}\nv_and_b32 v{d+2}, 0xffff0000, v{d+2}\nv_add_f32 v{d+2}, v{d+2}, v{d+3}\nv_cvt_pk_bf16_f32 v{d+2}, v{d+2}, v{d+2}')
    A(f's_mov_b64 exec, {sr(sM8,2)}\ns_add_u32 s{sT0}, s{sU3}, {AO}')
    for h in range(2):
        d=vFD+4*h
        A(f'buffer_store_short v{d+2}, v{vFINo}, {sr(sOUT,4)}, s{sU3} offen offset:{16*h}\nbuffer_store_short v{d+1}, v{vFINo}, {WS}, s{sT0} offen offset:{16*h}')
    A('s_mov_b64 exec, -1')
    A('L_BV5:')
    bst(5)
    wv(4)
    rng(None,59,'L_BVF1')
    A(f's_add_u32 s{sT0}, s{i}, 5\ns_mov_b64 exec, 1\nv_mov_b32 v{vT1}, s{sT0}\nv_mov_b32 v{vT2}, 0')
    lstore(A,[f'buffer_store_dword v{vT1}, v{vT2}, {WS}, s{sFV} offen'])
    A('s_mov_b64 exec, -1')
    A('L_BVF1:')
    A(f'v_add_u32 v{vFGA}, v{vFGA}, v{vFGS}\nbuffer_load_dword v{vFGV}, v{vFGA}, {WS}, 0 offen sc1')
    bst(6); bst(7)
    rng(3,66,'L_BV6w')
    for ct in range(4):
        lo=vAC+8*ct; q=vVM+4*ct
        A(f'v_cvt_pk_bf16_f32 v{q}, v{lo}, v{lo+1}\nv_cvt_pk_bf16_f32 v{q+1}, v{lo+2}, v{lo+3}\nv_mov_b32 v{q+2}, 0\nv_mov_b32 v{q+3}, 0')
    A(f's_mov_b64 exec, {sr(sHI,2)}')
    for ct in range(4):
        hi=vAC+8*ct+4; q=vVM+4*ct
        A(f'v_cvt_pk_bf16_f32 v{q}, v{hi}, v{hi+1}\nv_cvt_pk_bf16_f32 v{q+1}, v{hi+2}, v{hi+3}')
    A('s_mov_b64 exec, -1\ns_nop 1')
    for rt in range(2):
        for ct in range(4):
            acc=vr(vAC+4*(4*rt+ct),4)
            A(f'{MF} {acc}, {vr(pb+8*rt,4)}, {vr(vVX+4*ct,4)}, 0')
    for rt in range(2):
        for ct in range(4):
            acc=vr(vAC+4*(4*rt+ct),4)
            A(f'{MF} {acc}, {vr(pb+8*rt+4,4)}, {vr(vVM+4*ct,4)}, {acc}')
    A(f'v_mov_b32 v{vT1}, {L_FL+F_ORC}')
    A('L_OCP:')
    A(f'ds_read_b128 {vr(vVX,4)}, v{vT1}\ns_waitcnt lgkmcnt(0)\nv_min3_u32 v{vT2}, v{vVX}, v{vVX+1}, v{vVX+2}\nv_min_u32 v{vT2}, v{vT2}, v{vVX+3}\nv_cmp_gt_u32 vcc, s{sU1}, v{vT2}\ns_cbranch_vccz L_OCK')
    spin(A,'L_OCP')
    A('L_OCK:')
    A(f's_lshl_b32 s{sT0}, s{w}, 13\ns_add_u32 s{sT0}, s{sT0}, {L_OR}\nv_add_u32 v{vT0}, s{sT0}, v{vL16}\ns_add_u32 s{sT1}, s{sU1}, 1\nv_mov_b32 v{vT3}, s{sT1}\ns_lshl_b32 s{sT0}, s{w}, 11\ns_add_u32 s{sT0}, s{sT0}, {L_OR}\nv_add_u32 v{vT2}, s{sT0}, v{vL16}\nv_mov_b32 v{vT1}, {L_FL+F_OR}')
    for k in range(8): A(f'ds_write_b128 v{vT0}, {vr(vAC+4*k,4)} offset:{1024*k}')
    A(f'ds_write_b32 v{vFL}, v{vT3} offset:{F_OR}')
    A('L_ORP:')
    A(f'ds_read_b128 {vr(vVX,4)}, v{vT1}\ns_waitcnt lgkmcnt(0)\nv_min3_u32 v{vT0}, v{vVX}, v{vVX+1}, v{vVX+2}\nv_min_u32 v{vT0}, v{vT0}, v{vVX+3}\nv_cmp_gt_u32 vcc, s{sT1}, v{vT0}\ns_cbranch_vccz L_ORK')
    spin(A,'L_ORP')
    A('L_ORK:')
    bst(7)
    for h in range(2):
        for src in range(4): A(f'ds_read_b128 {vr(vAC+16*h+4*src,4)}, v{vT2} offset:{8192*src+1024*h}')
    A(f's_waitcnt lgkmcnt(0)\nds_write_b32 v{vFL}, v{vT3} offset:{F_ORC}')
    A(f's_and_b32 s{sT0}, s{sU1}, 15\ns_lshl_b32 s{sT0}, s{sT0}, 20\ns_add_u32 s{sT0}, s{sT0}, s{sOBs}')
    for h in range(2):
        p=vAC+16*h
        A(f'v_pk_add_f32 {vr(p,2)}, {vr(p,2)}, {vr(p+4,2)}\nv_pk_add_f32 {vr(p+2,2)}, {vr(p+2,2)}, {vr(p+6,2)}\nv_pk_add_f32 {vr(p+8,2)}, {vr(p+8,2)}, {vr(p+12,2)}\nv_pk_add_f32 {vr(p+10,2)}, {vr(p+10,2)}, {vr(p+14,2)}')
        A(f'v_pk_add_f32 {vr(p,2)}, {vr(p,2)}, {vr(p+8,2)}\nv_pk_add_f32 {vr(p+2,2)}, {vr(p+2,2)}, {vr(p+10,2)}')
        A(f'buffer_store_dwordx4 {vr(p,4)}, v{vOBw}, {WS}, s{sT0} offen offset:{256*h} sc1')
    A('s_branch L_BV6')
    A('L_BV6w:')
    A('s_waitcnt vmcnt(0)')
    A('L_BV6:')
    bst(8); bacc()
    P['rt'](10,i,(vT0,vT1))
    if P.get('trace'): A('s_waitcnt vmcnt(0)')
    A(f's_add_u32 s{i}, s{i}, 1\ns_cmp_le_i32 s{i}, 68\ns_cbranch_scc1 L_BV_LOOP')
    bdump(16)
    if P.get('bbranch',True): g8_mlp.fixup(A,locals())
    A('s_waitcnt vmcnt(0) lgkmcnt(0)\ns_endpgm')
```

```python
from asmlib import *
KNAME='gated_mix__memory_aug_recurrent_mem_tr__moe_arch_mod__prompt_kernel'
CBUF=0x000000; ABUF=0x080000; FLG=0x180000
BBMIN=0x200000
GR=0x800000; HB=0x810000; YP=0x820000
AO=0x900000
PB=0x1000000
XF=0x1800000
QX=0x2000000; KXG=0x3000000; VXG=0x4000000
KMG=0x5000000
OB=0x6000000
VWG=0xA000000
VWRING=8
DBGW=0xD000000
F1o=0
F2o=0x1000
F3o=0x5000
FGo=0x9000
FHo=0x9400; FYo=0xD000
FKo=0xA000
FVo=0xB000
FCo=0xC000
L_FL=0
L_ROLE=163584
LDS_BYTES=163840
L_XS=131072; XSROW=2064
L_R1=1024; L_R2=25600; L_VWM=33792; L_KX=41984; L_VX=107520
L_XR=1024; L_OR=50176; L_XB=82944
F_R1=0; F_R1V=32; F_R2=64; F_VWM=80; F_CH=112; F_PRG=128; F_AV=160; F_KXR=192; F_BI=224
F_XR=0; F_OR=32; F_ORC=48; F_PGO=64; F_XD=96; F_XC=128
SPIN=1<<22
sWS=4; sX=8; sT=12; sOUT=16; sDBG=20
sWAVE=24; sXC=25; sR=26; sMODE=27; sS=28; sS1=29; sT0=30; sT1=31
sW=64; sT2=65; sT3=66; sSPIN=67; sSPG=68; sBB=69; sNUMA=70; sRL=71
sM8=90; sLO=92; sHI=94; sCM=96
MF='v_mfma_f32_16x16x32_bf16'
WS=sr(sWS,4)
def srd(A,b,p,size):
    A(f's_mov_b32 s{b}, s{p}\ns_and_b32 s{b+1}, s{p+1}, 0xffff\ns_mov_b32 s{b+2}, {size}\ns_mov_b32 s{b+3}, 0x20000')
def spin(A,back):
    A(f's_add_u32 s{sSPIN}, s{sSPIN}, 1\ns_cmp_lt_u32 s{sSPIN}, {SPIN}\ns_cbranch_scc1 {back}\ns_branch L_END')
def delay(A,n):
    if n<=0: return
    k=n//64
    if k>0: A(f's_sleep {k}')
    r=(n%64)//4
    if r>0: A.nop(r)
def lstore(A,instrs):
    l1=A.newlabel('LS'); l2=A.newlabel('LD')
    A(f's_cmp_eq_u32 s{sMODE}, 0\ns_cbranch_scc0 {l1}')
    for i in instrs: A(i)
    A(f'{l2}:')
    A.ool.append((l1,[i+' sc1' if i.startswith('buffer_store') else i for i in instrs],l2))
```

```python
from g7_common import *
vWF=40
vWG=136
def F(i): return vr(vWF+i*4,4)
def G(t,ct): return vr(vWG+(t*2+ct)*4,4)
def prologue(A,rt=None):
    A.lines += [f'; @launch grid=(256,1,1) block=(768,1,1) lds={LDS_BYTES}',
      '.amdgcn_target "amdgcn-amd-amdhsa--gfx950"','.text',f'.globl {KNAME}','.p2align 8',f'.type {KNAME},@function',f'{KNAME}:']
    A('s_cmp_ge_u32 s2, 256\ns_cbranch_scc1 L_END')
    A('s_load_dwordx16 s[32:47], s[0:1], 0\ns_load_dwordx16 s[48:63], s[0:1], 64')
    A(f'v_lshrrev_b32 v2, 6, v0\nv_and_b32 v0, 63, v0\nv_readfirstlane_b32 s{sWAVE}, v2\nv_lshlrev_b32 v1, 4, v0')
    A(f's_and_b32 s{sW}, s{sWAVE}, 3')
    A('s_waitcnt lgkmcnt(0)')
    srd(A,sWS,62,0x10000000); srd(A,sX,32,4194304); srd(A,sOUT,58,4194304); srd(A,sDBG,60,256)
    A(f's_mov_b32 s{sM8}, 0x00ff00ff\ns_mov_b32 s{sM8+1}, 0x00ff00ff\ns_mov_b32 s{sLO}, -1\ns_mov_b32 s{sLO+1}, 0\ns_mov_b32 s{sHI}, 0\ns_mov_b32 s{sHI+1}, -1\ns_mov_b32 s{sCM}, 0x00ff00ff\ns_mov_b32 s{sCM+1}, 0')
    A(f's_add_u32 s{sBB}, s62, {BBMIN+0x1fffff}\ns_and_b32 s{sBB}, s{sBB}, 0xffe00000\ns_sub_u32 s{sBB}, s{sBB}, s62')
    A(f's_mov_b32 s{sSPIN}, 0\ns_mov_b32 s{sSPG}, 0')
    if rt: rt(0)
    A('v_mov_b32 v4, -1\nv_mov_b32 v5, -1\nv_mov_b32 v6, -1\nv_mov_b32 v7, -1')
    A(f's_cmp_ge_u32 s{sWAVE}, 8\ns_cbranch_scc1 L_PB')
    A(f's_lshl_b32 s{sT0}, s2, 14\ns_add_u32 s{sT0}, s{sT0}, s{sBB}\ns_lshl_b32 s{sT1}, s{sWAVE}, 10\ns_add_u32 s{sT0}, s{sT0}, s{sT1}\ns_add_u32 s{sT1}, s{sT0}, 8192')
    A(f'buffer_store_dwordx4 v[4:7], v1, {WS}, s{sT0} offen sc1\nbuffer_store_dwordx4 v[4:7], v1, {WS}, s{sT1} offen sc1\ns_branch L_PD')
    A('L_PB:')
    A(f's_mul_i32 s{sT0}, s2, 5120\ns_lshl_b32 s{sT1}, s{sW}, 10\ns_add_u32 s{sT1}, s{sT1}, s{sT0}')
    A(f'buffer_store_dwordx4 v[4:7], v1, {WS}, s{sT1} offen sc1')
    A(f's_cmp_lg_u32 s{sW}, 0\ns_cbranch_scc1 L_PC\ns_add_u32 s{sT1}, s{sT0}, 4096')
    A(f'buffer_store_dwordx4 v[4:7], v1, {WS}, s{sT1} offen sc1')
    A('L_PC:')
    A(f's_cmp_lg_u32 s{sW}, 1\ns_cbranch_scc1 L_PD')
    A(f'v_mov_b32 v8, 0\nv_lshlrev_b32 v9, 2, v0\ns_lshl_b32 s{sT1}, s2, 8\ns_add_u32 s{sT1}, s{sT1}, {FLG}')
    A(f'buffer_store_dword v8, v9, {WS}, s{sT1} offen sc1')
    A('L_PD:')
    A(f's_getreg_b32 s{sXC}, hwreg(HW_REG_XCC_ID)\ns_and_b32 s{sXC}, s{sXC}, 15')
    A(f's_cmp_lg_u32 s{sWAVE}, 0\ns_cbranch_scc1 L_C0')
    A(f's_lshl_b32 s{sT0}, s{sXC}, 2\ns_mov_b64 exec, 1\nv_mov_b32 v8, 1\nv_mov_b32 v9, s{sT0}')
    A(f'buffer_atomic_add v8, v9, {sr(sDBG,4)}, 0 offen sc0')
    A(f's_waitcnt vmcnt(0)\nv_readfirstlane_b32 s{sR}, v8\ns_mov_b64 exec, -1')
    A('L_C0:')
    A(f's_cmp_lg_u32 s{sWAVE}, 1\ns_cbranch_scc1 L_C1')
    A(f's_cmp_ge_u32 s{sXC}, 8\ns_cbranch_scc1 L_C1')
    A('s_waitcnt vmcnt(0)\ns_mov_b64 exec, 1\nv_mov_b32 v9, 0')
    A('s_mov_b32 s72, 0x7fffffff\ns_mov_b32 s73, 0x7fffffff')
    for rep in range(2):
        for h,(so,acc) in enumerate(((sT0,72),(sT1,73))):
            A(f's_memtime s[74:75]\ns_waitcnt lgkmcnt(0)\nbuffer_load_dword v8, v9, {WS}, s{so} offen offset:{256*rep} sc1\ns_waitcnt vmcnt(0)\ns_memtime s[76:77]\ns_waitcnt lgkmcnt(0)\ns_sub_u32 s76, s76, s74\ns_min_u32 s{acc}, s{acc}, s76')
    A(f's_cmp_lt_u32 s73, s72\ns_cselect_b32 s72, 0x10000, 1')
    A(f's_lshr_b32 s73, s2, 7\ns_lshl_b32 s73, s73, 3\ns_add_u32 s73, s73, s{sXC}\ns_lshl_b32 s73, s73, 2\ns_add_u32 s73, s73, 128')
    A(f'v_mov_b32 v8, s72\nv_mov_b32 v9, s73\nbuffer_atomic_add v8, v9, {sr(sDBG,4)}, 0 offen')
    A(f'v_mov_b32 v9, 0\nv_mov_b32 v10, -1')
    for rep in range(2):
        for so in (sT0,sT1): A(f'buffer_store_dword v10, v9, {WS}, s{so} offen offset:{256*rep} sc1')
    A('s_mov_b64 exec, -1')
    A('L_C1:')
    A('s_waitcnt vmcnt(0)\ns_barrier')
    A(f's_cmp_lg_u32 s{sWAVE}, 0\ns_cbranch_scc1 L_C2')
    A(f's_mov_b64 exec, 1\nv_mov_b32 v8, 1\nv_mov_b32 v9, 64')
    A(f'buffer_atomic_add v8, v9, {sr(sDBG,4)}, 0 offen')
    A(f's_mov_b64 exec, -1\nv_lshlrev_b32 v9, 2, v0')
    A('L_C3:')
    A(f'buffer_load_dword v8, v9, {sr(sDBG,4)}, 0 offen sc1\ns_waitcnt vmcnt(0)')
    A(f'v_readlane_b32 s{sT0}, v8, 16\ns_cmp_eq_u32 s{sT0}, 256\ns_cbranch_scc1 L_C4')
    A(f's_sleep 2\ns_add_u32 s{sSPIN}, s{sSPIN}, 1\ns_cmp_lt_u32 s{sSPIN}, {SPIN}\ns_cbranch_scc1 L_C3')
    A('L_C4:')
    A(f'v_lshrrev_b32 v10, 16, v8\nv_and_b32 v11, 0xffff, v8\nv_cmp_gt_u32 vcc, v10, v11\ns_and_b32 s{sNUMA}, vcc_hi, 0xffff')
    A(f's_and_b32 s{sT0}, s{sNUMA}, 0xff\ns_bcnt1_i32_b32 s{sT1}, s{sT0}\ns_cmp_eq_u32 s{sT1}, 4\ns_cselect_b32 s{sT0}, s{sT0}, 0xf0')
    A(f's_lshr_b32 s{sT2}, s{sNUMA}, 8\ns_bcnt1_i32_b32 s{sT1}, s{sT2}\ns_cmp_eq_u32 s{sT1}, 4\ns_cselect_b32 s{sT2}, s{sT2}, 0xf0\ns_lshl_b32 s{sT2}, s{sT2}, 8\ns_or_b32 s{sNUMA}, s{sT0}, s{sT2}')
    A(f'v_cmp_eq_u32 vcc, 32, v8\ns_and_b32 s{sT0}, vcc_lo, 0xff\ns_mov_b32 s{sMODE}, 0\ns_cmp_eq_u32 s{sT0}, 0xff\ns_cbranch_scc1 L_C5')
    A(f's_mov_b32 s{sMODE}, 1\ns_lshr_b32 s{sXC}, s2, 5\ns_and_b32 s{sR}, s2, 31\ns_mov_b32 s{sNUMA}, 0xf0f0')
    A('L_C5:')
    A(f'v_mov_b32 v8, s{sXC}\nv_mov_b32 v9, s{sR}\nv_mov_b32 v10, s{sMODE}\nv_mov_b32 v11, s{sNUMA}\nv_mov_b32 v12, {L_ROLE}')
    A('ds_write_b128 v12, v[8:11]\ns_waitcnt lgkmcnt(0)')
    A('L_C2:')
    A('s_barrier')
    A(f'v_mov_b32 v12, {L_ROLE}\nds_read_b128 v[8:11], v12\ns_waitcnt lgkmcnt(0)')
    A(f'v_readfirstlane_b32 s{sXC}, v8\nv_readfirstlane_b32 s{sR}, v9\nv_readfirstlane_b32 s{sMODE}, v10\nv_readfirstlane_b32 s{sNUMA}, v11')
    A(f's_and_b32 s{sXC}, s{sXC}, 7\ns_and_b32 s{sR}, s{sR}, 31')
    A(f's_and_b32 s{sRL}, s{sR}, 15')
def dma_round(A,rnd):
    lab=f'L_WD{rnd}'
    A(f's_cmp_ge_u32 s{sWAVE}, 8\ns_cbranch_scc1 {lab}')
    A(f's_lshl_b32 s{sT0}, s{sXC}, 10\ns_lshl_b32 s{sT1}, s{sRL}, 6\ns_add_u32 s{sT0}, s{sT0}, s{sT1}\ns_lshl_b32 s{sT1}, s{sWAVE}, 20\ns_add_u32 s{sT0}, s{sT0}, s{sT1}')
    A('v_lshrrev_b32 v8, 2, v0\nv_and_b32 v9, 3, v0\nv_lshlrev_b32 v9, 4, v9\nv_lshlrev_b32 v10, 13, v8\nv_add_u32 v10, v10, v9')
    A(f's_lshl_b32 s{sT2}, s{sWAVE}, 13')
    mats=[(36,0),(38,65536)] if rnd==0 else [(40,0)]
    for ptr,lb in mats:
        srd(A,sT,ptr,8388608)
        for i in range(8):
            A(f's_add_u32 s{sT1}, s{sT0}, {i*16*8192}\ns_add_u32 m0, s{sT2}, {lb+i*1024}\ns_nop 0')
            A(f'buffer_load_dwordx4 v10, {sr(sT,4)}, s{sT1} offen lds')
    if rnd==1:
        srd(A,sT,42,8388608)
        A(f's_lshl_b32 s{sT0}, s{sXC}, 20\ns_lshl_b32 s{sT1}, s{sWAVE}, 17\ns_add_u32 s{sT0}, s{sT0}, s{sT1}\ns_lshl_b32 s{sT1}, s{sRL}, 7\ns_add_u32 s{sT0}, s{sT0}, s{sT1}')
        A('v_lshrrev_b32 v8, 3, v0\nv_and_b32 v9, 7, v0\nv_lshlrev_b32 v9, 4, v9\nv_lshlrev_b32 v11, 11, v8\nv_add_u32 v11, v11, v9')
        for i in range(8):
            A(f's_add_u32 s{sT1}, s{sT0}, {i*8*2048}\ns_add_u32 m0, s{sT2}, {65536+i*1024}\ns_nop 0')
            A(f'buffer_load_dwordx4 v11, {sr(sT,4)}, s{sT1} offen lds')
    A(f'{lab}:')
def tr_round(A,rnd):
    end=f'L_TR{rnd}E'
    A(f's_cmp_ge_u32 s{sWAVE}, 8\ns_cbranch_scc1 L_TR{rnd}G')
    A('v_lshrrev_b32 v8, 4, v0\nv_lshlrev_b32 v8, 3, v8\nv_bfe_u32 v9, v0, 2, 2\nv_add_u32 v8, v8, v9\nv_lshlrev_b32 v12, 7, v8\nv_lshlrev_b32 v8, 6, v8\nv_and_b32 v9, 3, v0\nv_lshlrev_b32 v9, 3, v9\nv_add_u32 v8, v8, v9\nv_add_u32 v12, v12, v9')
    ms=[(0,0),(1,65536)] if rnd==0 else [(2,0)]
    A(f's_cmp_ge_u32 s{sR}, 16\ns_cbranch_scc1 L_TR{rnd}B')
    A(f's_lshl_b32 s{sT0}, s{sWAVE}, 13\nv_add_u32 v9, s{sT0}, v8\nv_add_u32 v10, 0x10000, v9')
    for m,lb in ms:
        for eh in range(2):
            for u in range(4):
                b=vWF+((m*2+eh)*4+u)*4; off=u*2048+eh*32; va=9 if lb==0 else 10
                A(f'ds_read_b64_tr_b16 {vr(b,2)}, v{va} offset:{off}\nds_read_b64_tr_b16 {vr(b+2,2)}, v{va} offset:{off+256}')
        A('s_waitcnt lgkmcnt(0)')
    if rnd==1:
        A(f's_lshr_b32 s{sT0}, s{sWAVE}, 1\ns_lshl_b32 s{sT0}, s{sT0}, 14\ns_and_b32 s{sT1}, s{sWAVE}, 1\ns_lshl_b32 s{sT1}, s{sT1}, 6\ns_add_u32 s{sT0}, s{sT0}, s{sT1}\ns_add_u32 s{sT0}, s{sT0}, 65536\nv_add_u32 v10, s{sT0}, v12')
        for t in range(4):
            for ct in range(2):
                b=vWG+(t*2+ct)*4; off=t*4096+ct*32
                A(f'ds_read_b64_tr_b16 {vr(b,2)}, v10 offset:{off}\nds_read_b64_tr_b16 {vr(b+2,2)}, v10 offset:{off+512}')
    A(f's_branch {end}')
    A(f'L_TR{rnd}B:')
    A(f's_lshl_b32 s{sT0}, s{sW}, 14\ns_lshr_b32 s{sT1}, s{sWAVE}, 2\ns_lshl_b32 s{sT1}, s{sT1}, 5\ns_add_u32 s{sT0}, s{sT0}, s{sT1}\nv_add_u32 v9, s{sT0}, v8\nv_add_u32 v10, 0x10000, v9')
    for m,lb in ms:
        for t in range(8):
            b=vWF+(m*8+t)*4; off=t*2048; va=9 if lb==0 else 10
            A(f'ds_read_b64_tr_b16 {vr(b,2)}, v{va} offset:{off}\nds_read_b64_tr_b16 {vr(b+2,2)}, v{va} offset:{off+256}')
        A('s_waitcnt lgkmcnt(0)')
    A(f's_branch {end}')
    A(f'L_TR{rnd}G:')
    if rnd==1:
        A(f's_cmp_lt_u32 s{sR}, 16\ns_cbranch_scc1 {end}')
        A('v_lshrrev_b32 v8, 4, v0\nv_lshlrev_b32 v8, 3, v8\nv_bfe_u32 v9, v0, 2, 2\nv_add_u32 v8, v8, v9\nv_lshlrev_b32 v12, 7, v8\nv_and_b32 v9, 3, v0\nv_lshlrev_b32 v9, 3, v9\nv_add_u32 v12, v12, v9')
        A(f's_lshl_b32 s{sT0}, s{sW}, 14\ns_add_u32 s{sT0}, s{sT0}, 65536\nv_add_u32 v10, s{sT0}, v12')
        for t in range(4):
            for ct in range(4):
                b=104+(t*4+ct)*4; off=t*4096+ct*32
                A(f'ds_read_b64_tr_b16 {vr(b,2)}, v10 offset:{off}\nds_read_b64_tr_b16 {vr(b+2,2)}, v10 offset:{off+512}')
            A('s_waitcnt lgkmcnt(0)')
    A(f'{end}:')
    A('s_waitcnt lgkmcnt(0)')
def bi_calc(A,dst,dreg,page):
    A(f's_lshr_b32 s72, s{sNUMA}, {8*page}\ns_and_b32 s72, s72, 0xff')
    A(f's_lshr_b32 s73, s72, s{dreg}\ns_and_b32 s73, s73, 1')
    A(f's_xor_b32 s74, s72, 0xff\ns_cmp_eq_u32 s73, 1\ns_cselect_b32 s74, s72, s74')
    A(f's_lshl_b32 s75, 1, s{dreg}\ns_sub_u32 s75, s75, 1\ns_and_b32 s74, s74, s75\ns_bcnt1_i32_b32 s74, s74')
    A(f's_lshl_b32 s{dst}, s74, 1\ns_or_b32 s{dst}, s{dst}, s73\ns_lshl_b32 s{dst}, s{dst}, 13')
```

```python
from g7_pro import *
def gen_ca(A,P,retry,stamp):
    vLP=0; vL16=1; vR1w=2; vFL=3; vSTP=4; vBpub=5; vT0=6; vT1=7; vF=8; vACC=24
    sCX=78; sAX=79; sBP=80; sC=84; sA=85; sB1=86; sB2=87; sVW=88; sAV=89; sKM=98; sAVo=99; sFK=100; sKXs=76; sVXs=77; sF1a=101; sFVa=3
    c=sWAVE
    A('L_CA:')
    A('s_setprio 3')
    A(f'v_and_b32 v{vT0}, 7, v0\nv_lshlrev_b32 v{vACC}, 11, v{vT0}\nv_lshrrev_b32 v{vT1}, 4, v0\nv_lshlrev_b32 v{vACC+1}, 4, v{vT1}\nv_add_u32 v{vACC}, v{vACC}, v{vACC+1}')
    A(f'v_lshlrev_b32 v{vBpub}, 4, v{vT0}\nv_bfe_u32 v{vACC+1}, v0, 3, 1\nv_lshlrev_b32 v{vACC+1}, 3, v{vACC+1}\nv_add_u32 v{vBpub}, v{vBpub}, v{vACC+1}\nv_lshlrev_b32 v{vACC+1}, 7, v{vT1}\nv_add_u32 v{vBpub}, v{vBpub}, v{vACC+1}')
    A(f'v_lshlrev_b32 v{vT1}, 3, v{vT1}\nv_add_u32 v{vT1}, v{vT1}, v{vT0}\nv_lshlrev_b32 v{vLP}, 4, v{vT1}')
    A(f's_mul_i32 s{sT0}, s{c}, 3072\ns_add_u32 s{sT0}, s{sT0}, {L_R1}\nv_add_u32 v{vR1w}, s{sT0}, v{vLP}')
    A(f's_lshl_b32 s{sT0}, s{c}, 2\ns_add_u32 s{sT0}, s{sT0}, {L_FL}\nv_mov_b32 v{vFL}, s{sT0}')
    A(f'v_and_b32 v{vT0}, 0x80, v{vL16}\nv_lshlrev_b32 v{vT0}, 2, v{vT0}\nv_add_u32 v{vLP}, v{vLP}, v{vT0}')
    A(f's_lshl_b32 s{sCX}, s{sXC}, 16\ns_lshl_b32 s{sT0}, s{c}, 11\ns_add_u32 s{sCX}, s{sCX}, s{sT0}\ns_add_u32 s{sCX}, s{sCX}, {CBUF}')
    A(f's_mul_i32 s{sAX}, s{sXC}, 98304\ns_add_u32 s{sAX}, s{sAX}, {ABUF}')
    A(f's_lshr_b32 s{sT0}, s{sRL}, 2\ns_mul_i32 s{sAVo}, s{sT0}, 6144\ns_and_b32 s{sT0}, s{sRL}, 1\ns_lshl_b32 s{sT0}, s{sT0}, 10\ns_add_u32 s{sAVo}, s{sAVo}, s{sT0}\ns_bfe_u32 s{sT0}, s{sRL}, 0x10001\ns_lshl_b32 s{sT0}, s{sT0}, 7\ns_add_u32 s{sAVo}, s{sAVo}, s{sT0}\ns_lshl_b32 s{sT0}, s{c}, 9\ns_add_u32 s{sAVo}, s{sAVo}, s{sT0}\ns_add_u32 s{sAVo}, s{sAVo}, 4096')
    A(f's_lshr_b32 s{sT0}, s{sRL}, 2\ns_lshl_b32 s{sT1}, s{sT0}, 11\ns_add_u32 s{sKM}, s{sAVo}, s{sT1}\ns_lshl_b32 s{sT1}, s{sXC}, 15\ns_add_u32 s{sKM}, s{sKM}, s{sT1}\ns_add_u32 s{sKM}, s{sKM}, {KMG}')
    A(f's_lshl_b32 s{sFK}, s{sXC}, 8\ns_lshl_b32 s{sT0}, s{sRL}, 4\ns_add_u32 s{sFK}, s{sFK}, s{sT0}\ns_lshl_b32 s{sT0}, s{c}, 2\ns_add_u32 s{sFK}, s{sFK}, s{sT0}\ns_add_u32 s{sFK}, s{sFK}, {FLG+FKo+8}')
    A(f's_lshl_b32 s{sT2}, s{sRL}, 16\ns_add_u32 s{sT2}, s{sT2}, s{sBB}\ns_lshl_b32 s{sT3}, s{sXC}, 10\ns_add_u32 s{sT2}, s{sT2}, s{sT3}\ns_and_b32 s{sT3}, s{c}, 1\ns_lshl_b32 s{sT3}, s{sT3}, 9\ns_add_u32 s{sT2}, s{sT2}, s{sT3}')
    for d in range(2):
        A(f's_and_b32 s{sT0}, s{c}, 6\ns_add_u32 s{sT0}, s{sT0}, {d}')
        for pg in range(2):
            bi_calc(A,sBP+2*d+pg,sT0,pg); A(f's_add_u32 s{sBP+2*d+pg}, s{sBP+2*d+pg}, s{sT2}')
    A(f's_lshl_b32 s{sVW}, s{c}, 10\ns_add_u32 s{sVW}, s{sVW}, {L_VWM}')
    A(f's_lshl_b32 s{sKXs}, s{sXC}, 15\ns_lshl_b32 s{sT0}, s{c}, 12\ns_add_u32 s{sKXs}, s{sKXs}, s{sT0}\ns_add_u32 s{sKXs}, s{sKXs}, {KXG}')
    A(f's_lshl_b32 s{sT1}, s{sXC}, 4\ns_add_u32 s{sT1}, s{sT1}, s{sRL}\ns_lshl_b32 s{sVXs}, s{sT1}, 14\ns_lshl_b32 s{sT0}, s{c}, 11\ns_add_u32 s{sVXs}, s{sVXs}, s{sT0}\ns_add_u32 s{sVXs}, s{sVXs}, {VWG}')
    A(f's_lshr_b32 s{sT0}, s{c}, 1\ns_lshl_b32 s{sFVa}, s{sT1}, 4\ns_lshl_b32 s{sT2}, s{sT0}, 2\ns_add_u32 s{sFVa}, s{sFVa}, s{sT2}\ns_add_u32 s{sFVa}, s{sFVa}, {FLG+FVo}')
    A(f's_mul_i32 s{sF1a}, s{sXC}, 384\ns_lshl_b32 s{sT0}, s{sT0}, 5\ns_add_u32 s{sF1a}, s{sF1a}, s{sT0}\ns_add_u32 s{sF1a}, s{sF1a}, {FLG+F1o+128}')
    def fl_load():
        A(f'v_mov_b32 v{vF+15}, s{sFVa}\ns_mov_b64 exec, 0xff\nv_lshrrev_b32 v{vF+14}, 2, v{vL16}\nv_add_u32 v{vF+15}, s{sF1a}, v{vF+14}\ns_mov_b64 exec, -1')
        A(f'buffer_load_dword v{vF+14}, v{vF+15}, {WS}, 0 offen sc1')
    def kx_dma(tag,sN):
        A(f's_add_u32 s{sT3}, s{sN}, 1')
        A(f'L_KD{tag}:')
        if P.get('nobulk'): A(f's_branch L_KD{tag}K')
        A(f'v_cmp_gt_u32 vcc, s{sT3}, v{vF+14}\ns_cbranch_vccz L_KD{tag}K')
        A(f's_add_u32 s{sSPG}, s{sSPG}, {1<<24}\nbuffer_load_dword v{vF+14}, v{vF+15}, {WS}, 0 offen sc1\ns_waitcnt vmcnt(0)')
        spin(A,f'L_KD{tag}')
        A(f'L_KD{tag}K:')
        A(f's_and_b32 s{sT0}, s{sN}, 15\ns_lshl_b32 s{sT0}, s{sT0}, 18\ns_add_u32 s{sT0}, s{sT0}, s{sKXs}\ns_lshl_b32 s{sT2}, s{c}, 12\ns_add_u32 m0, s{sT2}, {L_KX}\ns_nop 0')
        for k in range(4): A(f'buffer_load_dwordx4 v{vL16}, {WS}, s{sT0} offen offset:{1024*k} sc1 lds')
        A(f's_and_b32 s{sT0}, s{sN}, {VWRING-1}\ns_lshl_b32 s{sT0}, s{sT0}, 21\ns_add_u32 s{sT0}, s{sT0}, s{sVXs}\ns_lshl_b32 s{sT2}, s{c}, 11\ns_add_u32 m0, s{sT2}, {L_VX}\ns_nop 0')
        for k in range(2): A(f'buffer_load_dwordx4 v{vL16}, {WS}, s{sT0} offen offset:{1024*k} sc1 lds')
    srd(A,sT,34,16384)
    A(f's_lshl_b32 s{sT0}, s{c}, 8')
    for u in range(4): A(f'buffer_load_dwordx4 {vr(vF+4*u,4)}, v{vACC}, {sr(sT,4)}, s{sT0} offen offset:{64*u}')
    A('s_waitcnt vmcnt(0)')
    for i in range(16): A(f'v_min_u32 v{vF+i}, -2, v{vF+i}')
    A(f's_mov_b32 s{sS}, 0')
    def setup():
        A(f's_add_u32 s{sS1}, s{sS}, 1\nv_mov_b32 v{vSTP}, s{sS1}\ns_and_b32 s{sT0}, s{sS}, 3')
        A(f's_lshl_b32 s{sT1}, s{sT0}, 14\ns_add_u32 s{sC}, s{sCX}, s{sT1}\ns_mul_i32 s{sT1}, s{sT0}, 24576\ns_add_u32 s{sT1}, s{sT1}, s{sAX}\ns_add_u32 s{sAV}, s{sT1}, s{sAVo}')
        A(f's_lshr_b32 s{sT2}, s{c}, 1\ns_mul_i32 s{sT2}, s{sT2}, 6144\ns_add_u32 s{sA}, s{sT1}, s{sT2}\ns_add_u32 s{sA}, s{sA}, 4096')
        A(f's_cmp_ge_u32 s{sT0}, 2\ns_cselect_b32 s{sB1}, s{sBP+1}, s{sBP}\ns_cselect_b32 s{sB2}, s{sBP+3}, s{sBP+2}\ns_lshl_b32 s{sT1}, s{sT0}, 20\ns_add_u32 s{sB1}, s{sB1}, s{sT1}\ns_add_u32 s{sB2}, s{sB2}, s{sT1}')
    def check(b,bad):
        A(f'v_max3_u32 v{vT0}, v{b}, v{b+1}, v{b+2}\nv_max_u32 v{vT0}, v{vT0}, v{b+3}\nv_cmp_eq_u32 vcc, -1, v{vT0}\ns_cbranch_vccnz {bad}')
    def ldswait(tag,off,sreg):
        A(f'v_mov_b32 v{vT1}, {L_FL+off}')
        if P.get('lowspin'): A('s_setprio 0')
        A(f'L_{tag}:')
        A(f'ds_read_b32 v{vT0}, v{vT1}\ns_waitcnt lgkmcnt(0)\nv_readfirstlane_b32 s{sT0}, v{vT0}\ns_cmp_ge_u32 s{sT0}, s{sreg}\ns_cbranch_scc1 L_{tag}K')
        spin(A,f'L_{tag}')
        A(f'L_{tag}K:')
        if P.get('lowspin'): A('s_setprio 3')
    def cloads(qs):
        for q in qs: A(f'buffer_load_dwordx4 {vr(vF+8*q,4)}, v{vLP}, {WS}, s{sC} offen offset:{1024*q} sc1')
    p=vACC
    setup()
    A('s_barrier')
    A('s_branch L_CA_Q')
    A('L_CA_LOOP:')
    setup()
    A('s_waitcnt vmcnt(0)')
    A('s_barrier')
    stamp(0)
    delay(A,P['DC'])
    cloads(range(2))
    stamp(1)
    for q in range(2):
        A(f'L_CW{q}:\ns_waitcnt vmcnt({1-q})')
        for tl in range(4):
            acc=vr(vACC+4*tl,4)
            if tl==0 and False: pass
        check(vF+8*q,f'L_CR{q}')
        if q==0: stamp(2)
        retry.append((f'L_CR{q}',[(lambda qq=q: cloads(range(qq,2)))],f'L_CW{q}',1))
        for tl in range(4):
            acc=vr(vACC+4*tl,4)
            A(f'{MF} {acc}, {F(tl*4+2*q)}, {vr(vF+8*q,4)}, {"0" if q==0 else acc}')
            A(f'v_mov_b32_dpp v{vF+8*q+4+tl}, v{vF+8*q+tl} row_ror:8 row_mask:0xf bank_mask:0xf')
        A('s_nop 1')
        for tl in range(4):
            acc=vr(vACC+4*tl,4)
            A(f'{MF} {acc}, {F(tl*4+2*q+1)}, {vr(vF+8*q+4,4)}, {acc}')
    A('s_branch L_CA_Q2')
    A('L_CA_Q:')
    for u in range(4):
        for tl in range(4):
            acc=vr(vACC+4*tl,4)
            A(f'{MF} {acc}, {F(tl*4+u)}, {vr(vF+4*u,4)}, {"0" if u==0 else acc}')
    A('L_CA_Q2:')
    stamp(3)
    A(f's_mov_b64 exec, {sr(sM8,2)}')
    A.nop(4)
    for tl in range(4): A(f'ds_write_b128 v{vR1w}, {vr(vACC+4*tl,4)} offset:{512*tl}')
    A('s_mov_b64 exec, -1\ns_waitcnt lgkmcnt(0)\ns_barrier')
    stamp(4)
    for u in range(4):
        for tl in (4,5):
            acc=vr(vACC+4*(tl-4),4)
            A(f'{MF} {acc}, {F(tl*4+u)}, {vr(vF+4*u,4)}, {"0" if u==0 else acc}')
    A(f'v_lshrrev_b32 v{vT0}, 9, v{vL16}\nv_mul_u32_u24 v{vF+8}, {4*3072}, v{vT0}\nv_and_b32 v{vF+9}, 0x1f0, v{vL16}\nv_add_u32 v{vF+8}, v{vF+8}, v{vF+9}\ns_lshl_b32 s{sT0}, s{c}, 9\ns_add_u32 s{sT0}, s{sT0}, {L_R1+2048}\nv_add_u32 v{vF+8}, s{sT0}, v{vF+8}')
    A(f's_mov_b64 exec, {sr(sM8,2)}')
    for tl in (4,5): A(f'ds_write_b128 v{vR1w}, {vr(vACC+4*(tl-4),4)} offset:{512*tl}')
    A('s_mov_b64 exec, -1')
    A(f'v_and_b32 v{vF+13}, 0x7f, v{vBpub}\nv_and_b32 v{vF+10}, 0x100, v{vL16}\nv_add_u32 v{vF+13}, v{vF+13}, v{vF+10}\nv_lshlrev_b32 v{vT0}, 2, v{vT0}\nv_add_u32 v{vF+13}, v{vF+13}, v{vT0}')
    A('s_waitcnt lgkmcnt(0)\ns_barrier')
    stamp(5)
    A(f's_cmp_ge_u32 s{c}, 2\ns_cbranch_scc1 L_CA_NV')
    for src in range(4): A(f'ds_read_b128 {vr(p+4*src,4)}, v{vF+8} offset:{3072*src}')
    A('s_waitcnt lgkmcnt(0)')
    A(f'v_pk_add_f32 {vr(p,2)}, {vr(p,2)}, {vr(p+4,2)}\nv_pk_add_f32 {vr(p+2,2)}, {vr(p+2,2)}, {vr(p+6,2)}\nv_pk_add_f32 {vr(p+8,2)}, {vr(p+8,2)}, {vr(p+12,2)}\nv_pk_add_f32 {vr(p+10,2)}, {vr(p+10,2)}, {vr(p+14,2)}')
    A(f'v_pk_add_f32 {vr(p,2)}, {vr(p,2)}, {vr(p+8,2)}\nv_pk_add_f32 {vr(p+2,2)}, {vr(p+2,2)}, {vr(p+10,2)}\ns_nop 1')
    A(f'v_permlane32_swap_b32 v{p}, v{p+2}\nv_permlane32_swap_b32 v{p+1}, v{p+3}\ns_nop 1\nv_pk_add_f32 {vr(p,2)}, {vr(p,2)}, {vr(p+2,2)}\nv_cvt_pk_bf16_f32 v{vF+12}, v{p}, v{p+1}\nv_min_u32 v{vF+12}, -2, v{vF+12}')
    lstore(A,[f'buffer_store_dword v{vF+12}, v{vF+13}, {WS}, s{sAV} offen'])
    A(f's_mov_b64 exec, 1\nv_mov_b32 v{vT0}, 0\nv_mov_b32 v{vT1}, s{sS}')
    lstore(A,[f'buffer_store_dword v{vT1}, v{vT0}, {WS}, s{sFK} offen'])
    A('s_mov_b64 exec, -1')
    delay(A,P['DV'])
    A('s_branch L_CA_VG')
    A('L_CA_NV:')
    delay(A,P['DV']+P['DVR'])
    A('L_CA_VG:')
    vload=lambda u: A(f'buffer_load_dwordx4 {vr(vF+4*u,4)}, v{vL16}, {WS}, s{sA} offen offset:{1024*u} sc1')
    stamp(7)
    vload(0); vload(1)
    for u in range(2):
        A(f'L_VW{u}:\ns_waitcnt vmcnt({1-u})')
        check(vF+4*u,f'L_VR{u}')
        retry.append((f'L_VR{u}',[(lambda uu=uu: vload(uu)) for uu in range(u,2)],f'L_VW{u}',1<<10))
        for ct in range(2):
            lo=vACC+8*ct; hi=lo+4
            A(f'{MF} {vr(lo,4)}, {vr(vF+4*u,4)}, {G(u,ct)}, {"0" if u==0 else vr(lo,4)}')
            A(f'{MF} {vr(hi,4)}, {vr(vF+4*u,4)}, {G(u+2,ct)}, {"0" if u==0 else vr(hi,4)}')
    stamp(8)
    A(f'v_add_u32 v{vT1}, s{sVW}, v{vL16}')
    A.nop(5)
    d=vF+8
    for ct in range(2):
        lo=vACC+8*ct
        A(f'v_cvt_pk_bf16_f32 v{d+2*ct}, v{lo}, v{lo+1}\nv_cvt_pk_bf16_f32 v{d+2*ct+1}, v{lo+2}, v{lo+3}')
    A(f's_mov_b64 exec, {sr(sHI,2)}')
    for ct in range(2):
        hi=vACC+8*ct+4
        A(f'v_cvt_pk_bf16_f32 v{d+2*ct}, v{hi}, v{hi+1}\nv_cvt_pk_bf16_f32 v{d+2*ct+1}, v{hi+2}, v{hi+3}')
    A('s_mov_b64 exec, -1')
    A(f'ds_write_b128 v{vT1}, {vr(d,4)}\nds_write_b32 v{vFL}, v{vSTP} offset:{F_VWM}')
    stamp(9)
    A(f's_cmp_eq_u32 s{sS}, 63\ns_cbranch_scc1 L_CA_CP')
    A(f's_and_b32 s{sT0}, s{c}, 1\ns_lshl_b32 s{sT0}, s{sT0}, 10\ns_add_u32 s{sT0}, s{sT0}, {L_R2}\nv_add_u32 v{vF+4}, s{sT0}, v{vL16}')
    stamp(6)
    A('s_barrier')
    stamp(10)
    for src in range(4): A(f'ds_read_b128 {vr(p+4*src,4)}, v{vF+4} offset:{2048*src}')
    A('s_waitcnt lgkmcnt(0)' if P['stamps'] else 's_waitcnt lgkmcnt(2)')
    A(f'v_pk_add_f32 {vr(p,2)}, {vr(p,2)}, {vr(p+4,2)}\nv_pk_add_f32 {vr(p+2,2)}, {vr(p+2,2)}, {vr(p+6,2)}')
    A('s_waitcnt lgkmcnt(0)')
    A(f'v_pk_add_f32 {vr(p+8,2)}, {vr(p+8,2)}, {vr(p+12,2)}\nv_pk_add_f32 {vr(p+10,2)}, {vr(p+10,2)}, {vr(p+14,2)}')
    A(f'v_pk_add_f32 {vr(p,2)}, {vr(p,2)}, {vr(p+8,2)}\nv_pk_add_f32 {vr(p+2,2)}, {vr(p+2,2)}, {vr(p+10,2)}')
    A(f'v_cvt_pk_bf16_f32 v{p+4}, v{p}, v{p+1}\nv_cvt_pk_bf16_f32 v{p+5}, v{p+2}, v{p+3}\nv_min_u32 v{p+4}, -2, v{p+4}\nv_min_u32 v{p+5}, -2, v{p+5}')
    A(f'buffer_store_dwordx2 {vr(p+4,2)}, v{vBpub}, {WS}, s{sB1} offen sc1')
    A(f'buffer_store_dwordx2 {vr(p+4,2)}, v{vBpub}, {WS}, s{sB2} offen sc1')
    stamp(11)
    A('s_barrier')
    A('L_CA_CP:')
    A(f's_cmp_ge_u32 s{c}, 2\ns_cbranch_scc1 L_CA_NP')
    A(f'v_mov_b32 v{vT0}, -1\ns_and_b32 s{sT1}, s{sS}, 15\ns_lshl_b32 s{sT1}, s{sT1}, 18\ns_add_u32 s{sT1}, s{sT1}, s{sKM}')
    A(f's_add_u32 s{sT0}, s{sS}, 3\ns_and_b32 s{sT0}, s{sT0}, 3\ns_mul_i32 s{sT0}, s{sT0}, 24576\ns_add_u32 s{sT0}, s{sT0}, s{sAX}\ns_add_u32 s{sT0}, s{sT0}, s{sAVo}')
    lstore(A,[f'buffer_store_dword v{vF+12}, v{vF+13}, {WS}, s{sT1} offen', f'buffer_store_dword v{vT0}, v{vF+13}, {WS}, s{sT0} offen'])
    A(f's_cmp_lg_u32 s{sS}, 63\ns_cbranch_scc1 L_CA_NP')
    A(f's_waitcnt vmcnt(0)\ns_mov_b64 exec, 1\nv_mov_b32 v{vT0}, 0')
    lstore(A,[f'buffer_store_dword v{vSTP}, v{vT0}, {WS}, s{sFK} offen'])
    A('s_mov_b64 exec, -1')
    A('L_CA_NP:')
    A(f's_cmp_eq_u32 s{sS}, 63\ns_cbranch_scc1 L_CA_DONE')
    stamp('acc')
    A(f's_add_u32 s{sS}, s{sS}, 1\ns_branch L_CA_LOOP')
    A('L_CA_DONE:')
    stamp('dump')
    A('s_waitcnt vmcnt(0) lgkmcnt(0)\ns_endpgm')

def gen_cb(A,P,retry,stamp):
    vL16=1; vR2w=2; vFL=3; vSTP=4; vApub=5; vCpub=6; vBpol=7; vT0=8; vT1=9; vT2=10; vT3=11; vR1r=12; vFGA=14; vFGV=15; vVMa=16
    vSEL=20; vONE=24; vHALF=28; vKX=32; vQK=64; vS=80; vP=92; vO=100; vSUM=116; vVWX=120; vVWM=136; vB=152; vSEH=160
    sCX=78; sAX=79; sBR=80; sA=82; sApub=83; sB=84; sCpub=85; sCEXP=86; sKV=88; sVWs=89; sU0=72; sU1=73; sU2=74; sKM=98; sAo=99; sFK=100; sCo=101; sK1=76; sK2=77
    w=sW
    A('L_CB:')
    A('s_setprio 3')
    A(f'v_lshrrev_b32 v{vT0}, 4, v0\nv_lshlrev_b32 v{vT0}, 3, v{vT0}\nv_and_b32 v{vT1}, 7, v0\nv_add_u32 v{vT0}, v{vT0}, v{vT1}\nv_lshlrev_b32 v{vT0}, 4, v{vT0}')
    A(f's_lshl_b32 s{sT0}, s{w}, 11\ns_add_u32 s{sT0}, s{sT0}, {L_R2}\nv_add_u32 v{vR2w}, s{sT0}, v{vT0}')
    A(f'v_lshrrev_b32 v{vT0}, 5, v0\nv_mul_u32_u24 v{vR1r}, 12288, v{vT0}\nv_and_b32 v{vT2}, 0x1f0, v{vL16}\nv_add_u32 v{vR1r}, v{vR1r}, v{vT2}\ns_lshl_b32 s{sT0}, s{w}, 9\ns_add_u32 s{sT0}, s{sT0}, {L_R1}\nv_add_u32 v{vR1r}, s{sT0}, v{vR1r}')
    A(f's_lshl_b32 s{sT0}, s{w}, 2\ns_add_u32 s{sT0}, s{sT0}, {L_FL}\nv_mov_b32 v{vFL}, s{sT0}')
    A(f'v_lshlrev_b32 v{vApub}, 4, v{vT1}\nv_bfe_u32 v{vT2}, v0, 3, 1\nv_lshlrev_b32 v{vT2}, 3, v{vT2}\nv_add_u32 v{vApub}, v{vApub}, v{vT2}\nv_bfe_u32 v{vT2}, v0, 4, 1\nv_lshlrev_b32 v{vT2}, 8, v{vT2}\nv_add_u32 v{vApub}, v{vApub}, v{vT2}\nv_lshlrev_b32 v{vT0}, 2, v{vT0}\nv_add_u32 v{vApub}, v{vApub}, v{vT0}')
    A(f's_lshr_b32 s{sT0}, s{sRL}, 2\ns_mul_i32 s{sAo}, s{sT0}, 6144\ns_and_b32 s{sT1}, s{sRL}, 3\ns_lshl_b32 s{sT1}, s{sT1}, 10\ns_add_u32 s{sAo}, s{sAo}, s{sT1}\ns_and_b32 s{sT1}, s{w}, 1\ns_lshl_b32 s{sT1}, s{sT1}, 9\ns_add_u32 s{sAo}, s{sAo}, s{sT1}\ns_lshr_b32 s{sT1}, s{w}, 1\ns_lshl_b32 s{sT1}, s{sT1}, 7\ns_add_u32 s{sAo}, s{sAo}, s{sT1}')
    A(f's_lshl_b32 s{sT1}, s{sT0}, 11\ns_add_u32 s{sKM}, s{sAo}, s{sT1}\ns_lshl_b32 s{sT1}, s{sXC}, 15\ns_add_u32 s{sKM}, s{sKM}, s{sT1}\ns_add_u32 s{sKM}, s{sKM}, {KMG}')
    A(f's_lshl_b32 s{sFK}, s{sXC}, 8\ns_lshl_b32 s{sT0}, s{sRL}, 4\ns_add_u32 s{sFK}, s{sFK}, s{sT0}\ns_and_b32 s{sT0}, s{w}, 1\ns_lshl_b32 s{sT0}, s{sT0}, 2\ns_add_u32 s{sFK}, s{sFK}, s{sT0}\ns_add_u32 s{sFK}, s{sFK}, {FLG+FKo}')
    A(f'v_lshrrev_b32 v{vT0}, 3, v0\nv_lshlrev_b32 v{vT0}, 10, v{vT0}\nv_lshlrev_b32 v{vT2}, 4, v{vT1}\nv_add_u32 v{vT0}, v{vT0}, v{vT2}\ns_lshl_b32 s{sT0}, s{w}, 8\nv_add_u32 v{vBpol}, s{sT0}, v{vT0}')
    A(f'v_lshrrev_b32 v{vT0}, 5, v0\nv_lshlrev_b32 v{vT0}, 7, v{vT0}\nv_add_u32 v{vCpub}, v{vT0}, v{vT2}\nv_bfe_u32 v{vT0}, v0, 4, 1\nv_lshlrev_b32 v{vT0}, 3, v{vT0}\nv_add_u32 v{vCpub}, v{vCpub}, v{vT0}')
    A(f's_lshl_b32 s{sCo}, s{sRL}, 10\ns_lshl_b32 s{sT0}, s{w}, 8\ns_add_u32 s{sCo}, s{sCo}, s{sT0}')
    for i in range(4): A(f'v_mov_b32 v{vSEL+i}, 0\nv_mov_b32 v{vSEH+i}, 0\nv_mov_b32 v{vONE+i}, 0x3f803f80\nv_mov_b32 v{vHALF+i}, 0x3f003f00')
    A(f'v_and_b32 v{vT0}, 15, v0')
    for i in range(16):
        dq=(vSEL if i<8 else vSEH)+(i&7)//2
        A(f'v_cmp_eq_u32 vcc, {i}, v{vT0}\nv_mov_b32 v{vT1}, {0x3f80<<(16*(i&1))}\ns_nop 1\nv_cndmask_b32 v{dq}, v{dq}, v{vT1}, vcc')
    for q in range(4): A(f'v_mov_b32 v{vVWM+4*q+2}, 0\nv_mov_b32 v{vVWM+4*q+3}, 0')
    A(f's_lshl_b32 s{sT0}, s{w}, 11\ns_add_u32 s{sT0}, s{sT0}, {L_VWM}\nv_add_u32 v{vVMa}, s{sT0}, v{vL16}')
    A(f's_lshl_b32 s{sT0}, s{sXC}, 8\ns_lshl_b32 s{sT1}, s{sRL}, 4\ns_add_u32 s{sT0}, s{sT0}, s{sT1}\ns_lshl_b32 s{sT1}, s{w}, 2\ns_add_u32 s{sT0}, s{sT0}, s{sT1}\ns_add_u32 s{sT0}, s{sT0}, {FLG+FVo}\nv_mov_b32 v{vFGA}, s{sT0}')
    A(f's_mul_i32 s{sT0}, s{sXC}, 384\ns_lshl_b32 s{sT1}, s{w}, 5\ns_add_u32 s{sT0}, s{sT0}, s{sT1}\ns_add_u32 s{sT0}, s{sT0}, {FLG+F1o+128}\ns_mov_b64 exec, 0xff\nv_lshlrev_b32 v{vT0}, 2, v0\nv_add_u32 v{vFGA}, s{sT0}, v{vT0}\ns_mov_b64 exec, -1')
    A(f's_lshl_b32 s{sCX}, s{sXC}, 16\ns_add_u32 s{sCX}, s{sCX}, {CBUF}\ns_add_u32 s{sCX}, s{sCX}, s{sCo}\ns_mul_i32 s{sAX}, s{sXC}, 98304\ns_add_u32 s{sAX}, s{sAX}, {ABUF}')
    A(f's_lshl_b32 s{sT2}, s{sRL}, 16\ns_add_u32 s{sT2}, s{sT2}, s{sBB}')
    for pg in range(2):
        bi_calc(A,sBR+pg,sXC,pg); A(f's_add_u32 s{sBR+pg}, s{sBR+pg}, s{sT2}')
    A(f's_mov_b32 s{sCEXP}, 0x3e0293ee\ns_mov_b32 s{sCEXP+1}, 0x3e0293ee')
    A(f's_lshl_b32 s{sKV}, s{sXC}, 2\ns_add_u32 s{sKV}, s{sKV}, s{w}\ns_lshl_b32 s{sKV}, s{sKV}, 13\ns_add_u32 s{sKV}, s{sKV}, {KXG}')
    A(f's_lshl_b32 s{sVWs}, s{sXC}, 4\ns_add_u32 s{sVWs}, s{sVWs}, s{sRL}\ns_lshl_b32 s{sVWs}, s{sVWs}, 2\ns_add_u32 s{sVWs}, s{sVWs}, s{w}\ns_lshl_b32 s{sVWs}, s{sVWs}, 12\ns_add_u32 s{sVWs}, s{sVWs}, {VWG}')
    A(f's_lshl_b32 s{sT1}, s{w}, 13\ns_add_u32 s{sT1}, s{sT1}, {L_KX}\nv_add_u32 v18, s{sT1}, v{vL16}\ns_lshl_b32 s{sT1}, s{w}, 12\ns_add_u32 s{sT1}, s{sT1}, {L_VX}\nv_add_u32 v19, s{sT1}, v{vL16}')
    A(f's_lshl_b32 s{sT0}, s{w}, 3\ns_add_u32 s{sT0}, s{sT0}, {L_FL+F_VWM}\nv_mov_b32 v13, s{sT0}')
    A(f's_mov_b32 s{sS}, -1')
    A('L_CF0:')
    A(f'buffer_load_dword v{vFGV}, v{vFGA}, {WS}, 0 offen sc1\ns_waitcnt vmcnt(0)\nv_cmp_eq_u32 vcc, 0, v{vFGV}\ns_cbranch_vccz L_CF0K')
    if P.get('nobulk'): A('s_branch L_CF0K')
    A('s_sleep 1')
    spin(A,'L_CF0')
    A('L_CF0K:')
    A(f's_add_u32 s{sT1}, s{sKV}, 4096')
    for k in range(8): A(f'buffer_load_dwordx4 {vr(vKX+4*k,4)}, v{vL16}, {WS}, s{sKV if k<4 else sT1} offen offset:{1024*(k&3)} sc1')
    for k in range(4): A(f'buffer_load_dwordx4 {vr(vVWX+4*k,4)}, v{vL16}, {WS}, s{sVWs} offen offset:{1024*k} sc1')
    A('s_branch L_W2')
    def check(b,bad):
        A(f'v_max3_u32 v{vT2}, v{b}, v{b+1}, v{b+2}\nv_max_u32 v{vT2}, v{vT2}, v{b+3}\nv_cmp_eq_u32 vcc, -1, v{vT2}\ns_cbranch_vccnz {bad}')
    T0,T1,T2=vS,vS+4,vS+8
    p=vO
    A('L_CB_LOOP:')
    for i in range(4): A(f'v_mov_b32 v{T0+i}, 0')
    A(f's_mov_b64 exec, {sr(sLO,2)}')
    for i in range(4): A(f'v_mov_b32 v{T0+i}, 0xf149f2ca')
    A('s_mov_b64 exec, -1')
    A(f's_add_u32 s{sT0}, s{sS}, 1\ns_and_b32 s{sT0}, s{sT0}, 15\ns_lshl_b32 s{sT0}, s{sT0}, 18\ns_add_u32 s{sK1}, s{sT0}, s{sKV}\ns_add_u32 s{sK2}, s{sK1}, 4096\ns_add_u32 s{sU1}, s{sS}, 2')
    delay(A,P['DP'])
    A(f's_cmp_lt_i32 s{sS}, 1\ns_cbranch_scc1 L_W1f')
    for i in range(4): A(f'v_mov_b32 v{vT0+i}, -1')
    A(f'buffer_store_dwordx4 {vr(vT0,4)}, v{vBpol}, {WS}, s{sB} offen sc1\nbuffer_store_dwordx4 {vr(vT0,4)}, v{vBpol}, {WS}, s{sB} offen offset:128 sc1')
    A(f's_add_u32 s{sT0}, s{sS}, 3\ns_and_b32 s{sT0}, s{sT0}, 3\ns_lshl_b32 s{sT1}, s{sT0}, 14\ns_add_u32 s{sT1}, s{sT1}, s{sCX}')
    A(f's_add_u32 s{sT0}, s{sS}, 2\ns_and_b32 s{sT0}, s{sT0}, 3\ns_mul_i32 s{sT0}, s{sT0}, 24576\ns_add_u32 s{sT0}, s{sT0}, s{sAX}\ns_add_u32 s{sT0}, s{sT0}, s{sAo}')
    lstore(A,[f'buffer_store_dword v{vT0}, v{vApub}, {WS}, s{sT0} offen', f's_mov_b64 exec, {sr(sM8,2)}', f'buffer_store_dwordx2 {vr(vT0,2)}, v{vCpub}, {WS}, s{sT1} offen', 's_mov_b64 exec, -1'])
    A('L_W1f:')
    A(f'buffer_load_dword v{vFGV}, v{vFGA}, {WS}, 0 offen sc1')
    stamp(8)
    A('s_waitcnt lgkmcnt(0)\ns_barrier')
    stamp(0)
    for src in range(4): A(f'ds_read_b128 {vr(p+4*src,4)}, v{vR1r} offset:{3072*src}')
    A('s_waitcnt lgkmcnt(0)' if P['stamps'] else 's_waitcnt lgkmcnt(2)')
    A(f'v_pk_add_f32 {vr(p,2)}, {vr(p,2)}, {vr(p+4,2)}\nv_pk_add_f32 {vr(p+2,2)}, {vr(p+2,2)}, {vr(p+6,2)}')
    A('s_waitcnt lgkmcnt(0)')
    A(f'v_pk_add_f32 {vr(p+8,2)}, {vr(p+8,2)}, {vr(p+12,2)}\nv_pk_add_f32 {vr(p+10,2)}, {vr(p+10,2)}, {vr(p+14,2)}')
    A(f'v_pk_add_f32 {vr(p,2)}, {vr(p,2)}, {vr(p+8,2)}\nv_pk_add_f32 {vr(p+2,2)}, {vr(p+2,2)}, {vr(p+10,2)}\ns_nop 1')
    A(f'v_permlane32_swap_b32 v{p}, v{p+2}\nv_permlane32_swap_b32 v{p+1}, v{p+3}\ns_nop 1\nv_pk_add_f32 {vr(p,2)}, {vr(p,2)}, {vr(p+2,2)}\nv_cvt_pk_bf16_f32 v17, v{p}, v{p+1}\nv_min_u32 v17, -2, v17')
    lstore(A,[f'buffer_store_dword v17, v{vApub}, {WS}, s{sApub} offen'])
    stamp(1)
    A('s_barrier')
    delay(A,P['DA'])
    aload=lambda f: A(f'buffer_load_dwordx4 {vr(vQK+4*f,4)}, v{vL16}, {WS}, s{sA} offen offset:{1024*f} sc1')
    stamp(2)
    for f in range(4): aload(f)
    for f in range(4):
        A(f'L_AW{f}:\ns_waitcnt vmcnt({3-f})')
        check(vQK+4*f,f'L_AR{f}')
        if f==0: stamp(3)
        retry.append((f'L_AR{f}',[(lambda ff=ff: aload(ff)) for ff in range(f,4)],f'L_AW{f}',1<<10))
        fr=vr(vQK+4*f,4)
        A(f'{MF} {vr(T1,4)}, {vr(vKX+4*f,4)}, {fr}, {"0" if f==0 else vr(T1,4)}')
        A(f'{MF} {vr(T2,4)}, {vr(vKX+16+4*f,4)}, {fr}, {"0" if f==0 else vr(T2,4)}')
        A(f'{MF} {vr(T0,4)}, {fr}, {fr}, {vr(T0,4)}')
    stamp(4)
    A(f's_cmp_eq_u32 s{sS}, 63\ns_cbranch_scc1 L_W1')
    mx=vT0; t1=vT1
    kx=lambda k: A(f'buffer_load_dwordx4 {vr(vKX+4*k,4)}, v{vL16}, {WS}, s{sK1 if k<4 else sK2} offen offset:{1024*(k&3)} sc1')
    A('L_FGC:')
    if not P.get('nobulk'):
        A(f'v_cmp_gt_u32 vcc, s{sU1}, v{vFGV}\ns_cbranch_vccnz L_FGR')
    else: A.nop(2)
    kx(0)
    A(f'v_max3_f32 v{mx}, v{vS+4}, v{vS+5}, v{vS+6}\nv_max3_f32 v{t1}, v{vS+7}, v{vS+8}, v{vS+9}\nv_max3_f32 v{mx}, v{mx}, v{vS+10}, v{vS+11}\nv_max3_f32 v{t1}, v{t1}, v{vS}, v{vS+1}\nv_max3_f32 v{mx}, v{mx}, v{vS+2}, v{vS+3}\nv_max_f32 v{mx}, v{mx}, v{t1}')
    A(f'v_mov_b32 v{t1}, v{mx}\ns_nop 0'); kx(1); A(f'v_permlane32_swap_b32 v{mx}, v{t1}\ns_nop 0\nv_max_f32 v{mx}, v{mx}, v{t1}')
    A(f'v_mov_b32 v{t1}, v{mx}\ns_nop 1\nv_permlane16_swap_b32 v{mx}, v{t1}\ns_nop 0\nv_max_f32 v{mx}, v{mx}, v{t1}')
    A(f'v_mul_f32 v{mx}, s{sCEXP}, v{mx}\nv_mul_f32 v{t1}, 1.0, v{mx}')
    kx(2)
    for i in (4,6,8,10,0,2): A(f'v_pk_fma_f32 {vr(vS+i,2)}, {vr(vS+i,2)}, {sr(sCEXP,2)}, {vr(mx,2)} neg_lo:[0,0,1] neg_hi:[0,0,1]')
    for i in (4,5,6,7): A(f'v_exp_f32 v{vS+i}, v{vS+i}')
    kx(3)
    for i in (8,9,10,11): A(f'v_exp_f32 v{vS+i}, v{vS+i}')
    A('L_VMP:')
    A(f'ds_read_b64 {vr(vB,2)}, v13')
    for q in range(4): A(f'ds_read_b64 {vr(vVWM+4*q,2)}, v{vVMa} offset:{1024*(q>>1)+8*(q&1)}')
    A(f's_cmp_eq_u32 s{sU0}, 1\ns_cbranch_scc1 L_VMC')
    for i in (0,1,2,3): A(f'v_exp_f32 v{vS+i}, v{vS+i}')
    kx(4)
    A(f'v_cvt_pk_bf16_f32 v{vP}, v{T1}, v{T1+1}\nv_cvt_pk_bf16_f32 v{vP+1}, v{T1+2}, v{T1+3}\nv_cvt_pk_bf16_f32 v{vP+2}, v{T2}, v{T2+1}\nv_cvt_pk_bf16_f32 v{vP+3}, v{T2+2}, v{T2+3}')
    A(f'v_cvt_pk_bf16_f32 v{vP+4}, v{T0}, v{T0+1}\nv_cvt_pk_bf16_f32 v{vP+5}, v{T0+2}, v{T0+3}\nv_cvt_pk_bf16_f32 v{vP+6}, v{T0}, v{T0+1}\nv_cvt_pk_bf16_f32 v{vP+7}, v{T0+2}, v{T0+3}')
    kx(5)
    A(f'{MF} {vr(vSUM,4)}, {vr(vONE,4)}, {vr(vP,4)}, 0')
    A(f'{MF} {vr(vO,4)}, {vr(vVWX,4)}, {vr(vP,4)}, 0')
    A(f'v_permlane32_swap_b32 v{vP+6}, v{vP+4}\nv_permlane32_swap_b32 v{vP+7}, v{vP+5}')
    for ct in range(1,4): A(f'{MF} {vr(vO+4*ct,4)}, {vr(vVWX+4*ct,4)}, {vr(vP,4)}, 0')
    A(f'{MF} {vr(vSUM,4)}, {vr(vHALF,4)}, {vr(vP+4,4)}, {vr(vSUM,4)}')
    kx(6)
    stamp(5)
    A('L_VMC:')
    A(f's_waitcnt lgkmcnt(0)\nv_min_u32 v{vT2}, v{vB}, v{vB+1}\nv_cmp_gt_u32 vcc, s{sS1}, v{vT2}\ns_cbranch_vccz L_VMK')
    A(f's_mov_b32 s{sU0}, 1')
    spin(A,'L_VMP')
    A('L_VMK:')
    stamp(6)
    for ct in range(4): A(f'{MF} {vr(vO+4*ct,4)}, {vr(vVWM+4*ct,4)}, {vr(vP+4,4)}, {vr(vO+4*ct,4)}')
    A(f'v_rcp_f32 v{vT0}, v{vSUM}\nv_rcp_f32 v{vT1}, v{vSUM}')
    kx(7)
    A.nop(2)
    A(f's_mov_b64 exec, {sr(sM8,2)}')
    for ct in range(4):
        A(f'v_pk_mul_f32 {vr(vO+4*ct,2)}, {vr(vO+4*ct,2)}, {vr(vT0,2)}\nv_pk_mul_f32 {vr(vO+4*ct+2,2)}, {vr(vO+4*ct+2,2)}, {vr(vT0,2)}')
        A(f'ds_write_b128 v{vR2w}, {vr(vO+4*ct,4)} offset:{512*ct}')
    A('s_mov_b64 exec, -1\ns_waitcnt lgkmcnt(0)\ns_barrier')
    stamp(7)
    A('L_W1:')
    def fkflag():
        l=A.newlabel('FK')
        A(f's_cmp_lt_u32 s{w}, 2\ns_cbranch_scc1 {l}')
        A(f's_mov_b64 exec, 1\nv_mov_b32 v{vT0}, 0')
        lstore(A,[f'buffer_store_dword v{vSTP}, v{vT0}, {WS}, s{sFK} offen'])
        A(f's_mov_b64 exec, -1\n{l}:')
    A(f's_cmp_eq_u32 s{sS}, 63\ns_cbranch_scc1 L_W1z\ns_barrier\nL_W1z:')
    stamp(9)
    A(f's_cmp_lt_u32 s{w}, 2\ns_cbranch_scc1 L_W1a')
    lstore(A,[f'buffer_store_dword v17, v{vApub}, {WS}, s{sU2} offen'])
    A('L_W1a:')
    A(f's_cmp_lg_u32 s{sS}, 63\ns_cbranch_scc1 L_W1b')
    A('s_waitcnt vmcnt(0)')
    fkflag()
    A('s_branch L_CB_DONE')
    A('L_W1b:')
    A(f's_and_b32 s{sT0}, s{sS1}, {VWRING-1}\ns_lshl_b32 s{sT0}, s{sT0}, 21\ns_add_u32 s{sT0}, s{sT0}, s{sVWs}')
    for k in range(4): A(f'buffer_load_dwordx4 {vr(vVWX+4*k,4)}, v{vL16}, {WS}, s{sT0} offen offset:{1024*k} sc1')
    A(f's_and_b32 s{sT0}, s{sS}, 3\ns_cmp_ge_u32 s{sT0}, 2\ns_cselect_b32 s{sB}, s{sBR+1}, s{sBR}\ns_lshl_b32 s{sT0}, s{sT0}, 20\ns_add_u32 s{sB}, s{sB}, s{sT0}')
    A(f's_and_b32 s{sT1}, s{sS1}, 3\ns_lshl_b32 s{sT1}, s{sT1}, 14\ns_add_u32 s{sCpub}, s{sCX}, s{sT1}')
    delay(A,P['DB'])
    stamp(10)
    A('L_BP:')
    A(f'buffer_load_dwordx4 {vr(vB,4)}, v{vBpol}, {WS}, s{sB} offen sc1\nbuffer_load_dwordx4 {vr(vB+4,4)}, v{vBpol}, {WS}, s{sB} offen offset:128 sc1')
    A('s_waitcnt vmcnt(0)')
    A(f'{MF} {vr(vO,4)}, {vr(vSEL,4)}, {vr(vB,4)}, 0\n{MF} {vr(vO,4)}, {vr(vSEH,4)}, {vr(vB+4,4)}, {vr(vO,4)}')
    b=vB
    A(f'v_max3_u32 v{vT2}, v{b}, v{b+1}, v{b+2}\nv_max3_u32 v{vT3}, v{b+3}, v{b+4}, v{b+5}\nv_max3_u32 v{vT2}, v{vT2}, v{b+6}, v{b+7}\nv_max_u32 v{vT2}, v{vT2}, v{vT3}\nv_cmp_eq_u32 vcc, -1, v{vT2}\ns_cbranch_vccz L_BOK')
    A(f's_add_u32 s{sSPG}, s{sSPG}, {1<<20}')
    spin(A,'L_BP')
    A('L_BOK:')
    stamp(11)
    A.nop(2)
    for i in range(4): A(f'v_add_f32_dpp v{vO+4+i}, v{vO+i}, v{vO+i} row_ror:8 row_mask:0xf bank_mask:0xf')
    A(f'v_cvt_pk_bf16_f32 v{vO}, v{vO+4}, v{vO+5}\nv_cvt_pk_bf16_f32 v{vO+1}, v{vO+6}, v{vO+7}\nv_min_u32 v{vO}, -2, v{vO}\nv_min_u32 v{vO+1}, -2, v{vO+1}')
    A(f's_mov_b64 exec, {sr(sM8,2)}')
    lstore(A,[f'buffer_store_dwordx2 {vr(vO,2)}, v{vCpub}, {WS}, s{sCpub} offen'])
    A('s_mov_b64 exec, -1')
    stamp(12)
    A('s_barrier')
    fkflag()
    A('s_branch L_W2b')
    A('L_W2:')
    A('s_barrier')
    A('L_W2b:')
    P['rt'](10,sS,(vT0,vT1))
    A(f's_add_u32 s{sS}, s{sS}, 1\ns_add_u32 s{sS1}, s{sS}, 1\nv_mov_b32 v{vSTP}, s{sS1}\ns_mov_b32 s{sU0}, 0')
    A(f's_and_b32 s{sT0}, s{sS}, 3\ns_mul_i32 s{sT1}, s{sT0}, 24576\ns_add_u32 s{sT1}, s{sT1}, s{sAX}\ns_add_u32 s{sApub}, s{sT1}, s{sAo}\ns_mul_i32 s{sT2}, s{w}, 6144\ns_add_u32 s{sA}, s{sT1}, s{sT2}')
    A(f's_and_b32 s{sU2}, s{sS}, 15\ns_lshl_b32 s{sU2}, s{sU2}, 18\ns_add_u32 s{sU2}, s{sU2}, s{sKM}')
    stamp('acc')
    A('s_branch L_CB_LOOP')
    A('L_FGR:')
    A(f's_add_u32 s{sSPG}, s{sSPG}, {1<<24}\nbuffer_load_dword v{vFGV}, v{vFGA}, {WS}, 0 offen sc1\ns_waitcnt vmcnt(0)')
    spin(A,'L_FGC')
    A('L_CB_DONE:')
    stamp('dump')
    A('s_waitcnt vmcnt(0) lgkmcnt(0)\ns_endpgm')
```

```python
from g7_pro import *
F_MS=160
F_IDX=192
def sync8(A,tag,val):
    A(f'v_mov_b32 v8, {val}\nds_write_b32 v3, v8 offset:{F_MS}\nv_mov_b32 v9, {L_FL+F_MS}')
    A(f'L_{tag}:')
    A(f'ds_read_b128 v[16:19], v9\nds_read_b128 v[20:23], v9 offset:16\ns_waitcnt lgkmcnt(0)\nv_min3_u32 v10, v16, v17, v18\nv_min3_u32 v10, v10, v19, v20\nv_min3_u32 v10, v10, v21, v22\nv_min_u32 v10, v10, v23\nv_cmp_gt_u32 vcc, {val}, v10\ns_cbranch_vccz L_{tag}K')
    spin(A,f'L_{tag}')
    A(f'L_{tag}K:')
def wave_max_u32(A,r,t):
    for sh in (8,4,2,1):
        A(f's_nop 1\nv_max_u32_dpp v{r}, v{r}, v{r} row_ror:{sh} row_mask:0xf bank_mask:0xf')
    for op in ('v_permlane16_swap_b32','v_permlane32_swap_b32'):
        A(f'v_mov_b32 v{t}, v{r}\ns_nop 1\n{op} v{r}, v{t}\ns_nop 1\nv_max_u32 v{r}, v{r}, v{t}')
def flagwait(A,tag,base,nlanes_mask,thr):
    A(f'v_lshlrev_b32 v8, 2, v0\nv_and_b32 v8, {nlanes_mask*4}, v8')
    A(f'L_{tag}:')
    A(f'buffer_load_dword v9, v8, {WS}, s{base} offen sc1\ns_waitcnt vmcnt(0)\nv_cmp_gt_u32 vcc, {thr}, v9\ns_cbranch_vccz L_{tag}K')
    A('s_sleep 2')
    spin(A,f'L_{tag}')
    A(f'L_{tag}K:')
def phase_b2(A,sI0,sI1,sNH,ptrs):
    w=sW
    A('s_waitcnt vmcnt(0)')
    for blk in range(4):
        A(f's_mov_b32 s{sT0}, {FLG+FGo+256*blk}')
        flagwait(A,f'MF{blk}',sT0,63,1)
    A(f'v_lshlrev_b32 v5, 7, v0\ns_mov_b32 s{sT0}, {GR+8192}')
    for k in range(8): A(f'buffer_load_dwordx4 {vr(136+4*k,4)}, v5, {WS}, s{sT0} offen offset:{16*k} sc1')
    A('v_lshlrev_b32 v6, 5, v0\nv_sub_u32 v6, 0xffff, v6\nv_mov_b32 v8, 0\nv_mov_b32 v9, 0\ns_waitcnt vmcnt(0)')
    for k in range(32):
        r=136+k
        A(f'v_ashrrev_i32 v10, 31, v{r}\nv_or_b32 v10, 0x80000000, v10\nv_xor_b32 v10, v10, v{r}\nv_and_b32 v10, 0xffff0000, v10\nv_subrev_u32 v11, {k}, v6\nv_or_b32 v10, v10, v11')
        A('v_min_u32 v11, v8, v10\nv_max_u32 v8, v8, v10\nv_max_u32 v9, v9, v11')
    A('v_mov_b32 v10, v8')
    wave_max_u32(A,10,11)
    A('v_cmp_eq_u32 vcc, v8, v10\ns_nop 1\nv_cndmask_b32 v8, v8, v9, vcc')
    wave_max_u32(A,8,11)
    A(f'v_readfirstlane_b32 s{sI0}, v10\nv_readfirstlane_b32 s{sI1}, v8')
    A(f's_and_b32 s{sI0}, s{sI0}, 0xffff\ns_sub_u32 s{sI0}, 0xffff, s{sI0}\ns_and_b32 s{sI0}, s{sI0}, 2047\ns_and_b32 s{sI1}, s{sI1}, 0xffff\ns_sub_u32 s{sI1}, 0xffff, s{sI1}\ns_and_b32 s{sI1}, s{sI1}, 2047')
    A(f'v_mov_b32 v8, s{sI0}\nv_mov_b32 v9, s{sI1}\nv_mov_b32 v10, 1\nv_mov_b32 v11, 1\nv_mov_b32 v5, {L_FL+F_IDX}\nds_write_b128 v5, v[8:11]')
    A(f's_lshl_b32 s{sT3}, s{sXC}, 4\ns_add_u32 s{sT3}, s{sT3}, s{sRL}\ns_cmp_ge_u32 s{sT3}, 112\ns_cbranch_scc1 L_B2END')
    for sI,d in ((sI0,sT0),(sI1,sT1)):
        A(f's_lshr_b32 s{d}, s{sI}, 4\ns_lshl_b32 s{d}, s{d}, 15\ns_and_b32 s{sT2}, s{sI}, 15\ns_lshl_b32 s{sT2}, s{sT2}, 4\ns_add_u32 s{d}, s{d}, s{sT2}')
    A(f'v_and_b32 v5, 1, v0\nv_cmp_eq_u32 vcc, 1, v5\nv_mov_b32 v5, s{sT0}\nv_mov_b32 v6, s{sT1}\nv_cndmask_b32 v5, v5, v6, vcc\nv_lshrrev_b32 v6, 4, v0\nv_lshlrev_b32 v6, 8, v6\nv_add_u32 v5, v5, v6')
    A(f's_lshl_b32 s{sT0}, s{w}, 13\ns_add_u32 s{sT0}, s{sT0}, {XF}\ns_add_u32 s{sT1}, s{sT0}, 4096')
    for t in range(8): A(f'buffer_load_dwordx4 {vr(136+4*t,4)}, v5, {WS}, s{sT0 if t<4 else sT1} offen offset:{1024*(t&3)}')
    A('v_lshrrev_b32 v5, 2, v0\nv_mul_u32_u24 v5, 7168, v5\nv_and_b32 v6, 3, v0\nv_lshlrev_b32 v6, 4, v6\nv_add_u32 v5, v5, v6')
    A(f'v_lshrrev_b32 v6, 4, v0\nv_lshlrev_b32 v6, 3, v6\nv_bfe_u32 v8, v0, 2, 2\nv_add_u32 v6, v6, v8\nv_lshlrev_b32 v6, 6, v6\nv_and_b32 v8, 3, v0\nv_lshlrev_b32 v8, 3, v8\nv_add_u32 v6, v6, v8\ns_lshl_b32 s{sT0}, s{w}, 14\ns_lshl_b32 s{sT1}, s{sNH}, 5\ns_add_u32 s{sT0}, s{sT0}, s{sT1}\ns_add_u32 s{sT0}, s{sT0}, {L_XB}\nv_add_u32 v6, s{sT0}, v6')
    for mi in range(2):
        sync8(A,f'MS{mi}a',1+2*mi)
        srd(A,sT,ptrs[mi],7340032)
        A(f's_mul_i32 s{sT0}, s{sWAVE}, {128*7168}\ns_lshl_b32 s{sT1}, s{sT3}, 6\ns_add_u32 s{sT0}, s{sT0}, s{sT1}\ns_lshl_b32 s{sT2}, s{sWAVE}, 13')
        for k in range(8):
            A(f's_add_u32 s{sT1}, s{sT0}, {k*16*7168}\ns_add_u32 m0, s{sT2}, {L_XB+k*1024}\ns_nop 0\nbuffer_load_dwordx4 v5, {sr(sT,4)}, s{sT1} offen lds')
        A('s_waitcnt vmcnt(0)')
        sync8(A,f'MS{mi}b',2+2*mi)
        acc=32+4*mi
        for t in range(8):
            b=16+4*(t&3)
            A(f'ds_read_b64_tr_b16 {vr(b,2)}, v6 offset:{t*2048}\nds_read_b64_tr_b16 {vr(b+2,2)}, v6 offset:{t*2048+256}\ns_waitcnt lgkmcnt(0)')
            A(f'{MF} {vr(acc,4)}, {vr(b,4)}, {vr(136+4*t,4)}, {"0" if t==0 else vr(acc,4)}')
    A.nop(8)
    A('ds_write_b128 v12, v[32:35]\nds_write_b128 v12, v[36:39] offset:1024\ns_waitcnt lgkmcnt(0)')
    sync8(A,'MSr',5)
    A(f's_cmp_lg_u32 s{w}, 0\ns_cbranch_scc1 L_B2END')
    for mi in range(2):
        for src in range(4): A(f'ds_read_b128 {vr(136+16*mi+4*src,4)}, v13 offset:{6144*src+1024*mi}')
    A('s_waitcnt lgkmcnt(0)')
    for mi in range(2):
        p=136+16*mi
        A(f'v_pk_add_f32 {vr(p,2)}, {vr(p,2)}, {vr(p+4,2)}\nv_pk_add_f32 {vr(p+2,2)}, {vr(p+2,2)}, {vr(p+6,2)}\nv_pk_add_f32 {vr(p+8,2)}, {vr(p+8,2)}, {vr(p+12,2)}\nv_pk_add_f32 {vr(p+10,2)}, {vr(p+10,2)}, {vr(p+14,2)}')
        A(f'v_pk_add_f32 {vr(p,2)}, {vr(p,2)}, {vr(p+8,2)}\nv_pk_add_f32 {vr(p+2,2)}, {vr(p+2,2)}, {vr(p+10,2)}')
        A(f'v_cvt_pk_bf16_f32 v{p+4}, v{p}, v{p+1}\nv_cvt_pk_bf16_f32 v{p+5}, v{p+2}, v{p+3}\nv_lshlrev_b32 v{p}, 16, v{p+4}\nv_and_b32 v{p+1}, 0xffff0000, v{p+4}\nv_lshlrev_b32 v{p+2}, 16, v{p+5}\nv_and_b32 v{p+3}, 0xffff0000, v{p+5}')
    for k in range(4):
        a=136+k
        A(f'v_mul_f32 v{144+k}, 0xbfb8aa3b, v{a}\nv_exp_f32 v{144+k}, v{144+k}\ns_nop 0\nv_add_f32 v{144+k}, 1.0, v{144+k}\nv_rcp_f32 v{144+k}, v{144+k}\ns_nop 0\nv_mul_f32 v{a}, v{a}, v{144+k}')
    A('v_cvt_pk_bf16_f32 v144, v136, v137\nv_cvt_pk_bf16_f32 v145, v138, v139\nv_lshlrev_b32 v136, 16, v144\nv_and_b32 v137, 0xffff0000, v144\nv_lshlrev_b32 v138, 16, v145\nv_and_b32 v139, 0xffff0000, v145')
    for k in range(4): A(f'v_mul_f32 v{136+k}, v{136+k}, v{152+k}')
    A('v_cvt_pk_bf16_f32 v144, v136, v137\nv_cvt_pk_bf16_f32 v145, v138, v139')
    A(f'v_and_b32 v5, 15, v0\nv_mul_u32_u24 v5, 7168, v5\nv_lshrrev_b32 v6, 4, v0\nv_lshlrev_b32 v6, 3, v6\nv_add_u32 v5, v5, v6\ns_lshl_b32 s{sT0}, s{sT3}, 6\ns_lshl_b32 s{sT1}, s{sNH}, 5\ns_add_u32 s{sT0}, s{sT0}, s{sT1}\ns_add_u32 s{sT0}, s{sT0}, {HB}')
    A(f's_mov_b32 exec_lo, 0x00030003\ns_mov_b32 exec_hi, 0x00030003\nbuffer_store_dwordx2 v[144:145], v5, {WS}, s{sT0} offen sc1\ns_waitcnt vmcnt(0)')
    A(f's_lshl_b32 s{sT0}, s{sT3}, 1\ns_add_u32 s{sT0}, s{sT0}, s{sNH}\ns_lshl_b32 s{sT0}, s{sT0}, 2\ns_add_u32 s{sT0}, s{sT0}, {FLG+FHo}\ns_mov_b64 exec, 1\nv_mov_b32 v8, 1\nv_mov_b32 v9, 0\nbuffer_store_dword v8, v9, {WS}, s{sT0} offen sc1\ns_mov_b64 exec, -1')
    A('L_B2END:')
def phase_b3(A,ptr):
    A('s_waitcnt vmcnt(0)')
    A(f's_mul_i32 s{sT0}, s{sRL}, 56\ns_add_u32 s{sT0}, s{sT0}, {FLG+FHo}')
    A('v_and_b32 v8, 15, v0\nv_min_u32 v8, 13, v8\nv_lshlrev_b32 v8, 2, v8')
    A('L_MH:')
    A(f'buffer_load_dword v9, v8, {WS}, s{sT0} offen sc1\ns_waitcnt vmcnt(0)\nv_cmp_eq_u32 vcc, 0, v9\ns_cbranch_vccz L_MHK')
    A('s_sleep 2')
    spin(A,'L_MH')
    A('L_MHK:')
    A(f'v_and_b32 v5, 1, v0\nv_mul_u32_u24 v5, 7168, v5\nv_lshrrev_b32 v6, 4, v0\nv_lshlrev_b32 v6, 4, v6\nv_add_u32 v5, v5, v6\ns_mul_i32 s{sT0}, s{sRL}, 448\ns_add_u32 s{sT0}, s{sT0}, {HB}')
    for t in range(7): A(f'buffer_load_dwordx4 {vr(136+4*t,4)}, v5, {WS}, s{sT0} offen offset:{64*t} sc1')
    sync8(A,'MS3a',7)
    srd(A,sT,ptr,7340032)
    A('v_lshrrev_b32 v5, 4, v0\nv_lshlrev_b32 v5, 11, v5\nv_and_b32 v6, 15, v0\nv_lshlrev_b32 v6, 4, v6\nv_add_u32 v5, v5, v6')
    A(f's_mul_i32 s{sT0}, s{sRL}, {224*2048}\ns_mul_i32 s{sT1}, s{sWAVE}, {28*2048}\ns_add_u32 s{sT0}, s{sT0}, s{sT1}\ns_lshl_b32 s{sT1}, s{sXC}, 8\ns_add_u32 s{sT0}, s{sT0}, s{sT1}\ns_mul_i32 s{sT2}, s{sWAVE}, 7168')
    for k in range(7):
        A(f's_add_u32 s{sT1}, s{sT0}, {k*4*2048}\ns_add_u32 m0, s{sT2}, {L_XB+k*1024}\ns_nop 0\nbuffer_load_dwordx4 v5, {sr(sT,4)}, s{sT1} offen lds')
    A('s_waitcnt vmcnt(0)')
    sync8(A,'MS3b',8)
    A(f'v_lshrrev_b32 v6, 4, v0\nv_lshlrev_b32 v6, 3, v6\nv_bfe_u32 v8, v0, 2, 2\nv_add_u32 v6, v6, v8\nv_lshlrev_b32 v6, 8, v6\nv_and_b32 v8, 3, v0\nv_lshlrev_b32 v8, 3, v8\nv_add_u32 v6, v6, v8\ns_lshl_b32 s{sT0}, s{sWAVE}, 5\ns_add_u32 s{sT0}, s{sT0}, {L_XB}\nv_add_u32 v6, s{sT0}, v6')
    for t in range(7):
        b=16+4*(t&3)
        A(f'ds_read_b64_tr_b16 {vr(b,2)}, v6 offset:{t*8192}\nds_read_b64_tr_b16 {vr(b+2,2)}, v6 offset:{t*8192+1024}\ns_waitcnt lgkmcnt(0)')
        A(f'{MF} v[32:35], {vr(b,4)}, {vr(136+4*t,4)}, {"0" if t==0 else "v[32:35]"}')
    A(f'v_and_b32 v5, 15, v0\nv_lshlrev_b32 v5, 9, v5\nv_lshrrev_b32 v6, 4, v0\nv_lshlrev_b32 v6, 4, v6\nv_add_u32 v5, v5, v6\ns_lshl_b32 s{sT0}, s{sXC}, 4\ns_add_u32 s{sT0}, s{sT0}, s{sRL}\ns_lshl_b32 s{sT2}, s{sT0}, 5\ns_lshl_b32 s{sT0}, s{sT0}, 10\ns_lshl_b32 s{sT1}, s{sWAVE}, 6\ns_add_u32 s{sT0}, s{sT0}, s{sT1}\ns_add_u32 s{sT0}, s{sT0}, {YP}')
    A(f's_mov_b32 exec_lo, 0x00030003\ns_mov_b32 exec_hi, 0x00030003\nbuffer_store_dwordx4 v[32:35], v5, {WS}, s{sT0} offen sc1\ns_waitcnt vmcnt(0)')
    A(f's_lshl_b32 s{sT1}, s{sWAVE}, 2\ns_add_u32 s{sT2}, s{sT2}, s{sT1}\ns_add_u32 s{sT2}, s{sT2}, {FLG+FYo}\ns_mov_b64 exec, 1\nv_mov_b32 v8, 1\nv_mov_b32 v9, 0\nbuffer_store_dword v8, v9, {WS}, s{sT2} offen sc1\ns_mov_b64 exec, -1')
    sync8(A,'MS3c',9)
def fixup(A,L):
    w=sW
    A('s_waitcnt vmcnt(0)')
    A(f'v_mov_b32 v8, {L_FL+F_IDX}')
    A('L_FX0:')
    A('ds_read_b128 v[16:19], v8\ns_waitcnt lgkmcnt(0)\nv_readfirstlane_b32 s72, v16\nv_readfirstlane_b32 s73, v17\nv_readfirstlane_b32 s74, v18\ns_cmp_eq_u32 s74, 1\ns_cbranch_scc1 L_FX0K')
    spin(A,'L_FX0')
    A('L_FX0K:')
    for k in range(2):
        sI=72+k
        A(f's_bfe_u32 s{sT0}, s{sI}, 0x30002\ns_cmp_lg_u32 s{sT0}, s{sXC}\ns_cbranch_scc1 L_FXE{k}')
        A(f's_lshr_b32 s{sT0}, s{sRL}, 1\ns_lshl_b32 s{sT1}, s{sT0}, 9\ns_and_b32 s{sT2}, s{sRL}, 1\ns_lshl_b32 s{sT2}, s{sT2}, 2\ns_add_u32 s{sT2}, s{sT2}, s{w}\ns_lshl_b32 s{sT3}, s{sT2}, 2\ns_add_u32 s{sT1}, s{sT1}, s{sT3}\ns_add_u32 s{sT1}, s{sT1}, {FLG+FYo}')
        A('v_and_b32 v8, 15, v0\nv_lshlrev_b32 v9, 5, v8')
        A(f'L_FY{k}:')
        A(f'buffer_load_dword v10, v9, {WS}, s{sT1} offen sc1\ns_waitcnt vmcnt(0)\nv_cmp_eq_u32 vcc, 0, v10\ns_cbranch_vccz L_FY{k}K')
        A('s_sleep 2')
        spin(A,f'L_FY{k}')
        A(f'L_FY{k}K:')
        A(f'v_lshrrev_b32 v9, 4, v0\nv_lshlrev_b32 v9, 10, v9\nv_lshlrev_b32 v10, 2, v8\nv_add_u32 v9, v9, v10\ns_lshl_b32 s{sT1}, s{sT0}, 14\ns_lshl_b32 s{sT3}, s{sT2}, 6\ns_add_u32 s{sT1}, s{sT1}, s{sT3}\ns_add_u32 s{sT1}, s{sT1}, {YP+512*k}')
        for m in range(4):
            A(f's_add_u32 s{sT3}, s{sT1}, {4096*m}\nbuffer_load_dword v{16+m}, v9, {WS}, s{sT3} offen sc1')
        A(f's_lshl_b32 s{sT1}, s{sI}, 11\ns_lshl_b32 s{sT3}, s{sRL}, 7\ns_add_u32 s{sT1}, s{sT1}, s{sT3}\ns_lshl_b32 s{sT3}, s{w}, 5\ns_add_u32 s{sT1}, s{sT1}, s{sT3}\nv_lshlrev_b32 v10, 1, v8\ns_add_u32 s{sT3}, s{sT1}, {AO}')
        A(f'buffer_load_ushort v20, v10, {sr(sX,4)}, s{sT1} offen\nbuffer_load_ushort v21, v10, {WS}, s{sT3} offen sc1')
        A(f's_lshl_b32 s{sT3}, s{sI}, 2\ns_add_u32 s{sT3}, s{sT3}, {GR}\nv_mov_b32 v11, 0\nbuffer_load_dword v22, v11, {WS}, s{sT3} offen sc1\ns_add_u32 s{sT3}, s{sT3}, 8192\nbuffer_load_dword v23, v11, {WS}, s{sT3} offen sc1\ns_waitcnt vmcnt(0)')
        A('v_add_f32 v16, v16, v17\nv_add_f32 v18, v18, v19\nv_add_f32 v16, v16, v18')
        for op in ('v_permlane16_swap_b32','v_permlane32_swap_b32'):
            A(f'v_mov_b32 v17, v16\ns_nop 1\n{op} v16, v17\ns_nop 1\nv_add_f32 v16, v16, v17')
        rb=lambda r: A(f'v_cvt_pk_bf16_f32 v{r}, v{r}, v{r}\nv_lshlrev_b32 v{r}, 16, v{r}')
        rb(16)
        A('v_mul_f32 v23, 0xbfb8aa3b, v23\nv_exp_f32 v23, v23\ns_nop 0\nv_add_f32 v23, 1.0, v23\nv_rcp_f32 v23, v23\ns_nop 0'); rb(23)
        A('v_mul_f32 v16, v16, v23'); rb(16)
        A('v_lshlrev_b32 v20, 16, v20\nv_lshlrev_b32 v21, 16, v21\nv_add_f32 v16, v16, v20'); rb(16)
        A('v_sub_f32 v17, 1.0, v22'); rb(17)
        A('v_mul_f32 v21, v22, v21'); rb(21)
        A('v_mul_f32 v16, v17, v16'); rb(16)
        A('v_add_f32 v16, v16, v21\nv_cvt_pk_bf16_f32 v16, v16, v16')
        A(f's_mov_b64 exec, 0xffff\nbuffer_store_short v16, v10, {sr(sOUT,4)}, s{sT1} offen\ns_mov_b64 exec, -1')
        A(f'L_FXE{k}:')
```

```python
import sys
from g7_common import *
from g7_pro import *
from g8_chain import gen_ca, gen_cb
from g7_bulk import *
TIMD=DBGW+0x200000
NW=12
TRC=DBGW+0x400000
def gen(**kw):
    P=dict(DC=128,DV=128,DVR=224,DA=64,DB=320,DP=576,B2AT=12,B3AT=28,AHEAD=8,stamps=False,timing=False)
    P.update(kw)
    A=Asm(); A.ool=[]
    def rt(k,sreg=None,vt=(2,3)):
        if not P.get('trace'): return
        A(f's_memrealtime s[72:73]\ns_mul_i32 s74, s2, 12\ns_add_u32 s74, s74, s{sWAVE}\ns_lshl_b32 s74, s74, 9\ns_add_u32 s74, s74, {TRC}')
        if sreg is not None: A(f's_add_u32 s75, s{sreg}, {k}\ns_lshl_b32 s75, s75, 2\ns_add_u32 s74, s74, s75')
        else: A(f's_add_u32 s74, s74, {4*k}')
        A(f's_waitcnt lgkmcnt(0)\ns_mov_b64 exec, 1\nv_mov_b32 v{vt[0]}, s72\nv_mov_b32 v{vt[1]}, 0\nbuffer_store_dword v{vt[0]}, v{vt[1]}, {WS}, s74 offen\ns_mov_b64 exec, -1')
    P['rt']=rt
    prologue(A,rt)
    rt(1)
    dma_round(A,0)
    gen_gate(A)
    A('s_waitcnt vmcnt(0)\ns_barrier')
    rt(2)
    gen_xf(A)
    tr_round(A,0)
    A('s_barrier')
    dma_round(A,1)
    A('s_waitcnt vmcnt(0)\ns_barrier')
    rt(3)
    gen_fgflag(A)
    tr_round(A,1)
    A('s_barrier')
    A(f'v_mov_b32 v8, 0\nv_lshlrev_b32 v9, 2, v0\nds_write_b32 v9, v8 offset:{L_FL}\nds_write_b32 v9, v8 offset:{L_FL+256}\ns_waitcnt lgkmcnt(0)\ns_barrier')
    rt(4)
    if P.get('trace'): A(f'v_mov_b32 v2, s{sR}\nv_mov_b32 v3, 0\ns_add_u32 s74, s74, 4\ns_mov_b64 exec, 1\nbuffer_store_dword v2, v3, {WS}, s74 offen\ns_mov_b64 exec, -1')
    A(f's_cmp_ge_u32 s{sR}, 16\ns_cbranch_scc1 L_BULK\ns_cmp_ge_u32 s{sWAVE}, 8\ns_cbranch_scc1 L_CB')
    retry=[]
    def mk_stamp(tag,nst,vtmp):
        def stamp(i):
            if not P['timing']: return
            if i=='acc':
                if P['stamps']:
                    A(f's_cmp_lg_u32 s{sS}, {30 if tag=="A" else 31}\ns_cbranch_scc1 L_NA{tag}')
                    A('s_waitcnt lgkmcnt(0)')
                    A(f's_lshl_b32 s{sT0}, s{sXC}, 4\ns_add_u32 s{sT0}, s{sT0}, s{sR}\ns_lshl_b32 s{sT0}, s{sT0}, 4\ns_add_u32 s{sT0}, s{sT0}, s{sWAVE}\ns_lshl_b32 s{sT0}, s{sT0}, 6\ns_add_u32 s{sT0}, s{sT0}, {TIMD+0x80000}')
                    A(f's_mov_b64 exec, 1\nv_mov_b32 v{vtmp+16}, 0')
                    for k in range(14): A(f'v_mov_b32 v{vtmp+k}, s{32+2*k}')
                    for k in range(4): A(f'buffer_store_dwordx4 {vr(vtmp+4*k,4)}, v{vtmp+16}, {WS}, s{sT0} offen offset:{16*k}')
                    A('s_mov_b64 exec, -1')
                    A(f'L_NA{tag}:')
                A(f's_cmp_lg_u32 s{sS}, 1\ns_cbranch_scc1 L_NB{tag}\ns_memtime s[60:61]\ns_waitcnt lgkmcnt(0)\nL_NB{tag}:')
                A(f's_cmp_lg_u32 s{sS}, 61\ns_cbranch_scc1 L_NC{tag}\ns_memtime s[62:63]\ns_waitcnt lgkmcnt(0)\nL_NC{tag}:')
            elif i=='dump':
                A('s_waitcnt vmcnt(0) lgkmcnt(0)\ns_sub_u32 s62, s62, s60')
                A(f's_lshl_b32 s{sT0}, s{sXC}, 4\ns_add_u32 s{sT0}, s{sT0}, s{sR}\ns_lshl_b32 s{sT0}, s{sT0}, 4\ns_add_u32 s{sT0}, s{sT0}, s{sWAVE}\ns_lshl_b32 s{sT0}, s{sT0}, 6\ns_add_u32 s{sT0}, s{sT0}, {TIMD}')
                A(f's_mov_b64 exec, 1\nv_mov_b32 v{vtmp}, s62\nv_mov_b32 v{vtmp+1}, s{sSPG}\nv_mov_b32 v{vtmp+2}, s{sMODE}\nv_mov_b32 v{vtmp+3}, s{sNUMA}\nv_mov_b32 v0, 0')
                A(f'buffer_store_dwordx4 {vr(vtmp,4)}, v0, {WS}, s{sT0} offen')
                A('s_mov_b64 exec, -1')
            elif P['stamps']: A(f's_memtime s[{32+2*i}:{33+2*i}]')
        return stamp
    gen_ca(A,P,retry,mk_stamp('A',5,20))
    gen_cb(A,P,retry,mk_stamp('B',7,80))
    A('L_BULK:')
    if P.get('nobulk'): A('s_endpgm')
    A(f's_cmp_ge_u32 s{sWAVE}, 8\ns_cbranch_scc1 L_BV')
    gen_xp(A,P)
    gen_bv(A,P)
    for (lab,loads,back,inc) in retry:
        A(f'{lab}:')
        A(f's_waitcnt vmcnt(0)\ns_add_u32 s{sSPG}, s{sSPG}, {inc}\ns_add_u32 s{sSPIN}, s{sSPIN}, 1\ns_cmp_ge_u32 s{sSPIN}, {SPIN}\ns_cbranch_scc1 L_END')
        for l in loads: l()
        A(f's_branch {back}')
    for (l1,ins,l2) in A.ool:
        A(f'{l1}:')
        for i in ins: A(i)
        A(f's_branch {l2}')
    A('L_END:\ns_endpgm')
    A.lines += ['.section .rodata,"a"','.p2align 6',f'.amdhsa_kernel {KNAME}','  .amdhsa_next_free_vgpr 168','  .amdhsa_next_free_sgpr 102','  .amdhsa_accum_offset 168','  .amdhsa_group_segment_fixed_size 0','  .amdhsa_kernarg_size 128','  .amdhsa_user_sgpr_count 2','  .amdhsa_user_sgpr_kernarg_segment_ptr 1','  .amdhsa_system_sgpr_workgroup_id_x 1','.end_amdhsa_kernel']
    return A.text()
if __name__=='__main__':
    open('k8.s','w').write(gen())
```

```python
from g11_pro import *
L_SELB=1024; L_XR=3072; L_OR=101376; L_XB=3072; L_MR=117760
VMG=0xC000000; FMo=0xE000
from g6_bk import wave_sum
import g8_mlp
g8_mlp.L_XB=49152
def gen_gate(A):
    A(f's_cmp_lt_u32 s{sWAVE}, 8\ns_cbranch_scc1 L_GT_SKIP')
    A('v_lshlrev_b32 v2, 5, v0')
    A(f's_lshl_b32 s{sT0}, s2, 14\ns_lshl_b32 s{sT1}, s{sW}, 12\ns_add_u32 s{sT0}, s{sT0}, s{sT1}')
    for rr in range(2):
        for hh in range(2): A(f'buffer_load_dwordx4 {vr(16+8*rr+4*hh,4)}, v2, {sr(sX,4)}, s{sT0} offen offset:{2048*rr+16*hh}')
    srd(A,sT,56,2048)
    for hh in range(2): A(f'buffer_load_dwordx4 {vr(32+4*hh,4)}, v2, {sr(sT,4)}, 0 offen offset:{16*hh}')
    srd(A,sT,48,2048)
    for hh in range(2): A(f'buffer_load_dwordx4 {vr(40+4*hh,4)}, v2, {sr(sT,4)}, 0 offen offset:{16*hh}')
    for i in range(4): A(f'v_mov_b32 v{8+i}, 0')
    A('s_waitcnt vmcnt(0)')
    A(f's_mul_i32 s{sT0}, s{sW}, {2*XSROW}\ns_add_u32 s{sT0}, s{sT0}, {L_XS}\nv_add_u32 v3, s{sT0}, v2')
    for rr in range(2):
        for hh in range(2): A(f'ds_write_b128 v3, {vr(16+8*rr+4*hh,4)} offset:{XSROW*rr+16*hh}')
    for d in range(8):
        A(f'v_lshlrev_b32 v48, 16, v{32+d}\nv_and_b32 v49, 0xffff0000, v{32+d}\nv_lshlrev_b32 v50, 16, v{40+d}\nv_and_b32 v51, 0xffff0000, v{40+d}')
        for rr in range(2):
            A(f'v_lshlrev_b32 v52, 16, v{16+8*rr+d}\nv_and_b32 v53, 0xffff0000, v{16+8*rr+d}')
            A(f'v_fmac_f32 v{8+rr}, v52, v48\nv_fmac_f32 v{10+rr}, v52, v50\nv_fmac_f32 v{8+rr}, v53, v49\nv_fmac_f32 v{10+rr}, v53, v51')
    wave_sum(A,[8,9,10,11],12)
    A('v_cvt_pk_bf16_f32 v12, v8, v9\nv_cvt_pk_bf16_f32 v13, v10, v11\nv_lshlrev_b32 v8, 16, v12\nv_and_b32 v9, 0xffff0000, v12\nv_lshlrev_b32 v10, 16, v13\nv_and_b32 v11, 0xffff0000, v13')
    for r in (8,9):
        A(f'v_mul_f32 v{r}, 0xbfb8aa3b, v{r}\nv_exp_f32 v{r}, v{r}\ns_nop 0\nv_add_f32 v{r}, 1.0, v{r}\nv_rcp_f32 v{r}, v{r}\ns_nop 0')
    A('v_cvt_pk_bf16_f32 v12, v8, v9\nv_lshlrev_b32 v8, 16, v12\nv_and_b32 v9, 0xffff0000, v12')
    A(f's_lshl_b32 s{sT0}, s2, 5\ns_lshl_b32 s{sT1}, s{sW}, 3\ns_add_u32 s{sT0}, s{sT0}, s{sT1}\ns_add_u32 s{sT0}, s{sT0}, {GR}\ns_add_u32 s{sT1}, s{sT0}, 8192')
    A(f's_mov_b64 exec, 1\nv_mov_b32 v12, 0\nbuffer_store_dwordx2 v[8:9], v12, {WS}, s{sT0} offen sc1\nbuffer_store_dwordx2 v[10:11], v12, {WS}, s{sT1} offen sc1\ns_mov_b64 exec, -1')
    A('s_waitcnt lgkmcnt(0)')
    A('L_GT_SKIP:')
def gen_xf(A):
    A(f's_cmp_lt_u32 s{sWAVE}, 8\ns_cbranch_scc1 L_XF_SKIP')
    A('v_lshrrev_b32 v2, 3, v0\nv_and_b32 v3, 7, v0')
    A(f'v_mul_u32_u24 v4, {XSROW}, v3\nv_lshlrev_b32 v5, 4, v2\nv_add_u32 v4, v4, v5')
    A(f's_lshl_b32 s{sT0}, s{sW}, 9\ns_add_u32 s{sT0}, s{sT0}, {L_XS}\nv_add_u32 v4, s{sT0}, v4')
    for q in range(4): A(f'ds_read_b128 {vr(16+4*q,4)}, v4 offset:{128*q}')
    A('v_lshlrev_b32 v5, 8, v2\nv_lshlrev_b32 v6, 4, v3\nv_add_u32 v5, v5, v6')
    A(f's_lshr_b32 s{sT0}, s2, 1\ns_lshl_b32 s{sT0}, s{sT0}, 15\ns_and_b32 s{sT1}, s2, 1\ns_lshl_b32 s{sT1}, s{sT1}, 7\ns_add_u32 s{sT0}, s{sT0}, s{sT1}\ns_lshl_b32 s{sT1}, s{sW}, 13\ns_add_u32 s{sT0}, s{sT0}, s{sT1}\ns_add_u32 s{sT0}, s{sT0}, {XF}\ns_add_u32 s{sT1}, s{sT0}, 4096')
    A('s_waitcnt lgkmcnt(0)')
    for q in range(4): A(f'buffer_store_dwordx4 {vr(16+4*q,4)}, v5, {WS}, s{sT0 if q<2 else sT1} offen offset:{2048*(q&1)} sc1')
    A('L_XF_SKIP:')
def gen_sel(A):
    A(f's_cmp_lg_u32 s{sWAVE}, 8\ns_cbranch_scc1 L_SELS')
    for i in range(8): A(f'v_mov_b32 v{16+i}, 0')
    A('v_and_b32 v8, 15, v0')
    for i in range(16):
        dq=16+i//2
        A(f'v_cmp_eq_u32 vcc, {i}, v8\nv_mov_b32 v9, {0x3f80<<(16*(i&1))}\ns_nop 1\nv_cndmask_b32 v{dq}, v{dq}, v9, vcc')
    A(f'ds_write_b128 v1, v[16:19] offset:{L_SELB}\nds_write_b128 v1, v[20:23] offset:{L_SELB+1024}')
    A('L_SELS:')
def gen_fgflag(A):
    A(f's_cmp_lg_u32 s{sWAVE}, 8\ns_cbranch_scc1 L_FGS')
    A(f's_lshl_b32 s{sT0}, s2, 2\ns_add_u32 s{sT0}, s{sT0}, {FLG+FGo}\ns_mov_b64 exec, 1\nv_mov_b32 v8, 100\nv_mov_b32 v9, 0\nbuffer_store_dword v8, v9, {WS}, s{sT0} offen sc1\ns_mov_b64 exec, -1')
    A('L_FGS:')


def mk_bst(A,P,tag,n):
    on=P.get('bstamps')
    def init():
        if on:
            for k in range(32,62): A(f's_mov_b32 s{k}, 0')
    def st(k):
        if on: A(f's_memtime s[{32+2*k}:{33+2*k}]\ns_waitcnt lgkmcnt(0)')
    def acc():
        if on:
            for k in range(n-1): A(f's_sub_u32 s{sT0}, s{32+2*(k+1)}, s{32+2*k}\ns_add_u32 s{52+k}, s{52+k}, s{sT0}')
    def dump(vt):
        if on:
            A('s_waitcnt vmcnt(0) lgkmcnt(0)')
            A(f's_lshl_b32 s{sT0}, s{sXC}, 4\ns_add_u32 s{sT0}, s{sT0}, s{sRL}\ns_lshl_b32 s{sT0}, s{sT0}, 4\ns_add_u32 s{sT0}, s{sT0}, s{sWAVE}\ns_lshl_b32 s{sT0}, s{sT0}, 6\ns_add_u32 s{sT0}, s{sT0}, {DBGW+0x300000}')
            A('s_mov_b64 exec, 1\nv_mov_b32 v0, 0')
            for k in range(12): A(f'v_mov_b32 v{vt+k}, s{52+min(k,9)}')
            for k in range(3): A(f'buffer_store_dwordx4 {vr(vt+4*k,4)}, v0, {WS}, s{sT0} offen offset:{16*k}')
            A('s_mov_b64 exec, -1')
    return init,st,acc,dump

def gen_xp(A,P):
    vL16=1; vXw=2; vFL=3; vSo=4; vT0=5; vT1=6; vXr=7
    vA=16; vX=136
    sXb=78; sSt=79; sPn=80; sFl=83; sCEXP=84; sU=85; sTC=86; sXb2=87; sNH=88; sMP=89; sRD=81; sFP=82; sMJ=98
    w=sW; c=sWAVE
    A('L_XPW0:')
    binit,bst,bacc,bdump=mk_bst(A,P,'X',6)
    binit()
    A(f's_lshr_b32 s{sNH}, s{sWAVE}, 2')
    A(f's_lshl_b32 s{sT0}, s{sWAVE}, 2\ns_add_u32 s{sT0}, s{sT0}, {L_FL}\nv_mov_b32 v{vFL}, s{sT0}')
    A(f'v_lshrrev_b32 v{vT0}, 5, v0\nv_lshlrev_b32 v{vXw}, 11, v{vT0}\nv_and_b32 v{vT1}, 31, v0\nv_lshl_add_u32 v{vXw}, v{vT1}, 3, v{vXw}\ns_lshl_b32 s{sT0}, s{c}, 8\ns_add_u32 s{sT0}, s{sT0}, {L_XR}\nv_add_u32 v{vXw}, s{sT0}, v{vXw}')
    A(f's_lshl_b32 s{sT0}, s{c}, 12\ns_add_u32 s{sT0}, s{sT0}, {L_XR}\nv_add_u32 v{vXr}, s{sT0}, v{vL16}')
    A(f'v_and_b32 v{vSo}, 7, v0\nv_lshlrev_b32 v{vSo}, 5, v{vSo}\nv_bfe_u32 v{vT1}, v0, 4, 1\nv_lshl_add_u32 v{vSo}, v{vT1}, 4, v{vSo}\nv_lshl_add_u32 v{vSo}, v{vT0}, 8, v{vSo}\nv_bfe_u32 v{vT1}, v0, 3, 1\nv_lshl_add_u32 v{vSo}, v{vT1}, 3, v{vSo}')
    A(f's_lshl_b32 s{sSt}, s{sXC}, 2\ns_lshr_b32 s{sT0}, s{sRL}, 2\ns_add_u32 s{sSt}, s{sSt}, s{sT0}\ns_lshl_b32 s{sSt}, s{sSt}, 13\ns_and_b32 s{sT0}, s{sRL}, 3\ns_lshl_b32 s{sT0}, s{sT0}, 10\ns_add_u32 s{sSt}, s{sSt}, s{sT0}\ns_and_b32 s{sT1}, s{c}, 1\ns_lshl_b32 s{sT0}, s{sT1}, 9\ns_add_u32 s{sSt}, s{sSt}, s{sT0}\ns_lshr_b32 s{sT2}, s{c}, 1\ns_lshl_b32 s{sT0}, s{sT2}, 24\ns_add_u32 s{sSt}, s{sSt}, s{sT0}\ns_add_u32 s{sSt}, s{sSt}, {QX}')
    A(f's_mul_i32 s{sFl}, s{sXC}, 384\ns_lshl_b32 s{sT0}, s{sT2}, 7\ns_add_u32 s{sFl}, s{sFl}, s{sT0}\ns_lshl_b32 s{sT0}, s{sRL}, 3\ns_add_u32 s{sFl}, s{sFl}, s{sT0}\ns_lshl_b32 s{sT0}, s{sT1}, 2\ns_add_u32 s{sFl}, s{sFl}, s{sT0}\ns_add_u32 s{sFl}, s{sFl}, {FLG+F1o}')
    A(f's_lshl_b32 s{sXb}, s{c}, 12\ns_add_u32 s{sXb}, s{sXb}, {XF}\ns_add_u32 s{sXb2}, s{sXb}, 32768')
    A(('s_mov_b32 s80, 1000\n' if P.get('noOP') else f's_mov_b32 s{sPn}, s{sRL}\n')+f's_mov_b32 s{sCEXP}, 0x3e0293ee\ns_mov_b32 s{sTC}, 0\ns_mov_b32 s{sMP}, {P["B3AT"]}\ns_mov_b32 s{sMJ}, 0\ns_mov_b32 s{sRD}, 0\ns_mov_b32 s{sFP}, 0')
    xload=lambda k: A(f'buffer_load_dwordx4 {vr(vX+4*k,4)}, v{vL16}, {WS}, s{sXb if k<4 else sXb2} offen offset:{1024*(k&3)}')
    adv=lambda sg: A(f's_{sg}_u32 s{sXb}, s{sXb}, 65536\ns_{sg}_u32 s{sXb2}, s{sXb2}, 65536')
    def reload():
        adv('sub')
        for k in range(8): xload(k)
        adv('add')
    def fgwait(tag,sblk):
        A(f'v_lshlrev_b32 v8, 2, v0\ns_lshl_b32 s{sT0}, s{sblk}, 8\ns_add_u32 s{sT0}, s{sT0}, {FLG+FGo}')
        A(f'L_{tag}:')
        A(f'buffer_load_dword v9, v8, {WS}, s{sT0} offen sc1\ns_waitcnt vmcnt(0)\nv_cmp_eq_u32 vcc, 0, v9\ns_cbranch_vccz L_{tag}K')
        A('s_sleep 1')
        spin(A,f'L_{tag}')
        A(f'L_{tag}K:')
    def wait8(tag,off,sreg):
        A(f'v_mov_b32 v{vT1}, {L_FL+off}')
        A(f'L_{tag}:')
        A(f'ds_read_b128 v[8:11], v{vT1}\nds_read_b128 v[12:15], v{vT1} offset:16\ns_waitcnt lgkmcnt(0)\nv_min3_u32 v8, v8, v9, v10\nv_min3_u32 v11, v11, v12, v13\nv_min3_u32 v8, v8, v14, v15\nv_min_u32 v8, v8, v11\nv_cmp_gt_u32 vcc, s{sreg}, v8\ns_cbranch_vccz L_{tag}K')
        spin(A,f'L_{tag}')
        A(f'L_{tag}K:')
    fgwait('FG0',sTC)
    for k in range(8): xload(k)
    adv('add')
    def flagflush(wait):
        l=A.newlabel('FF')
        A(f's_cmp_eq_u32 s{sFP}, 0\ns_cbranch_scc1 {l}')
        if wait: A('s_waitcnt vmcnt(0)')
        A(f's_mov_b64 exec, 1\nv_mov_b32 v8, 0\nv_mov_b32 v9, s{sFP}')
        lstore(A,[f'buffer_store_dword v9, v8, {WS}, s{sFl} offen'])
        A(f's_mov_b64 exec, -1\ns_mov_b32 s{sFP}, 0\n{l}:')
    A('L_XP:')
    A(f'v_mov_b32 v{vT1}, {L_FL+F_PGO}\nds_read_b128 v[8:11], v{vT1}\ns_waitcnt lgkmcnt(0)\nv_min3_u32 v8, v8, v9, v10\nv_min_u32 v8, v8, v11\nv_readfirstlane_b32 s{sT1}, v8')
    A(f's_cmp_gt_u32 s{sT1}, s{sPn}\ns_cbranch_scc1 L_PT')
    A(f's_cmp_ge_u32 s{sTC}, 64\ns_cbranch_scc1 L_XN')
    if P.get('bb_xp'): A(f's_cmp_eq_u32 s{sTC}, s{sMP}\ns_cbranch_scc1 L_XN')
    A(f's_add_u32 s{sT1}, s{sT1}, {P["AHEAD"]}\ns_cmp_ge_u32 s{sTC}, s{sT1}\ns_cbranch_scc1 L_XN')
    A(f's_sub_u32 s{sT0}, s{sTC}, s{sRD}\ns_cmp_lt_u32 s{sTC}, 5\ns_cselect_b32 s{sT1}, 1, 2\ns_cmp_lt_u32 s{sT0}, s{sT1}\ns_cbranch_scc1 L_XPG')
    A('L_XN:')
    A(f's_cmp_lt_u32 s{sRD}, s{sTC}\ns_cbranch_scc1 L_RED')
    flagflush(True)
    if P.get('bb_xp'):
        A(f's_cmp_lg_u32 s{sTC}, s{sMP}\ns_cbranch_scc1 L_NB3')
        g8_mlp.phase_b3(A,54)
        reload()
        A(f's_mov_b32 s{sMP}, 1000\ns_branch L_XP')
        A('L_NB3:')
    A(f's_cmp_lt_u32 s{sTC}, 64\ns_cbranch_scc1 L_XPS')
    A(f's_cmp_ge_u32 s{sPn}, 64\ns_cbranch_scc1 L_XP_DONE')
    A('L_XPS:')
    A('s_sleep 2')
    spin(A,'L_XP')
    A('L_XPG:')
    if P.get('bb_xp'):
        A(f's_mul_i32 s{sT0}, s{sMJ}, {P["B2ST"]}\ns_add_u32 s{sT0}, s{sT0}, {P["B2AT"]}\ns_cmp_lg_u32 s{sTC}, s{sT0}\ns_cbranch_scc1 L_NMJ\ns_cmp_ge_u32 s{sMJ}, 10\ns_cbranch_scc1 L_NMJ')
        flagflush(True)
        A(f's_cmp_eq_u32 s{sMJ}, 9\ns_cbranch_scc1 L_MJF')
        g8_mlp.b2_micro(A,sMJ,76,77,L_MR,L_MR+16384)
        A('s_branch L_MJE\nL_MJF:')
        g8_mlp.b2_final(A,L_MR+16384)
        A(f'L_MJE:\ns_add_u32 s{sMJ}, s{sMJ}, 1')
        A('L_NMJ:')
    bst(0)
    A(f's_add_u32 s{sU}, s{sTC}, 1\ns_and_b32 s{sT0}, s{sU}, 15\ns_cmp_lg_u32 s{sT0}, 0\ns_cbranch_scc1 L_XPG2\ns_cmp_ge_u32 s{sU}, 64\ns_cbranch_scc1 L_XPG2\ns_lshr_b32 s{sT2}, s{sU}, 4')
    fgwait('FG1',sT2)
    A('L_XPG2:')
    A(f's_and_b32 s{sT0}, s{sTC}, 1\ns_mul_i32 s{sT0}, s{sT0}, 49152\nv_add_u32 v{vT0}, s{sT0}, v{vXw}\ns_max_i32 s{sT3}, s{sTC}, 1\ns_sub_u32 s{sT3}, s{sT3}, 1')
    for rt in range(2):
        for u in range(4):
            A('s_waitcnt vmcnt(7)')
            for tl in range(6):
                acc=vr(vA+4*tl,4)
                A(f'{MF} {acc}, {F(tl*4+u)}, {vr(vX+16*rt+4*u,4)}, {"0" if u==0 else acc}')
            xload(4*rt+u)
        if rt==0: wait8('XC',F_XC,sT3)
        else: flagflush(False)
        A.nop(2)
        for tl in range(6):
            a=vA+4*tl
            A(f'v_cvt_pk_bf16_f32 v{a}, v{a}, v{a+1}\nv_cvt_pk_bf16_f32 v{a+1}, v{a+2}, v{a+3}\nds_write_b64 v{vT0}, {vr(a,2)} offset:{24576*rt+4096*tl}')
    adv('add')
    A(f'v_mov_b32 v{vT0}, s{sU}\nds_write_b32 v{vFL}, v{vT0} offset:{F_XR}')
    bst(1); bst(2); bst(3); bst(4); bst(5); bacc()
    A(f's_add_u32 s{sTC}, s{sTC}, 1\ns_branch L_XP')
    A('L_RED:')
    A(f's_add_u32 s{sU}, s{sRD}, 1\nv_mov_b32 v{vT0}, s{sU}')
    A(f's_cmp_ge_u32 s{c}, 6\ns_cbranch_scc1 L_XRS')
    flagflush(True)
    wait8('XRP',F_XR,sU)
    A(f'ds_read_b128 v[8:11], v{vL16} offset:{L_SELB}\nds_read_b128 v[12:15], v{vL16} offset:{L_SELB+1024}')
    A(f's_and_b32 s{sT0}, s{sRD}, 1\ns_mul_i32 s{sT0}, s{sT0}, 49152\nv_add_u32 v{vT1}, s{sT0}, v{vXr}')
    A(f's_and_b32 s{sT1}, s{sRD}, 15\ns_lshl_b32 s{sT1}, s{sT1}, 18\ns_add_u32 s{sT1}, s{sT1}, s{sSt}\ns_add_u32 s{sT0}, s{sT1}, 4096')
    for rt in range(2):
        for rd in range(4): A(f'ds_read_b128 {vr(vA+4*rd,4)}, v{vT1} offset:{24576*rt+1024*rd}')
        D=vA+16+4*rt
        for rd in range(4):
            A(f's_waitcnt lgkmcnt({3-rd})\n{MF} {vr(D,4)}, {"v[8:11]" if rd<2 else "v[12:15]"}, {vr(vA+4*rd,4)}, {"0" if rd==0 else vr(D,4)}')
    A.nop(8)
    for rt in range(2):
        D=vA+16+4*rt
        A(f'v_cvt_pk_bf16_f32 v{D}, v{D}, v{D+1}\nv_cvt_pk_bf16_f32 v{D+1}, v{D+2}, v{D+3}')
    lstore(A,[f'buffer_store_dwordx2 {vr(vA+16,2)}, v{vSo}, {WS}, s{sT1} offen', f'buffer_store_dwordx2 {vr(vA+20,2)}, v{vSo}, {WS}, s{sT0} offen'])
    A(f's_mov_b32 s{sFP}, s{sU}')
    A(f's_cmp_ge_u32 s{sRD}, 5\ns_cbranch_scc1 L_XRS')
    flagflush(True)
    A('L_XRS:')
    A(f'ds_write_b32 v{vFL}, v{vT0} offset:{F_XC}')
    P['rt'](10,sRD,(8,9))
    A(f's_add_u32 s{sRD}, s{sRD}, 1\ns_branch L_XP')
    A('L_PT:')
    A('s_waitcnt vmcnt(0)')
    flagflush(False)
    A(f's_mul_i32 s{sT0}, s{sXC}, 384\ns_lshl_b32 s{sT1}, s{w}, 5\ns_add_u32 s{sT0}, s{sT0}, s{sT1}\ns_add_u32 s{sT0}, s{sT0}, {FLG+F1o}\nv_and_b32 v8, 7, v0\nv_lshlrev_b32 v8, 2, v8\nv_and_b32 v9, 8, v0\nv_lshlrev_b32 v9, 4, v9\nv_add_u32 v8, v8, v9')
    A('L_PQ:')
    A(f'buffer_load_dword v9, v8, {WS}, s{sT0} offen sc1\ns_waitcnt vmcnt(0)\nv_cmp_ge_u32 vcc, s{sPn}, v9\ns_cbranch_vccz L_PQK')
    spin(A,'L_PQ')
    A('L_PQK:')
    A(f's_and_b32 s{sT2}, s{sPn}, 15\ns_lshl_b32 s{sT2}, s{sT2}, 5\ns_lshl_b32 s{sT0}, s{sXC}, 2\ns_add_u32 s{sT2}, s{sT2}, s{sT0}\ns_add_u32 s{sT2}, s{sT2}, s{w}\ns_lshl_b32 s{sT3}, s{sT2}, 12\ns_add_u32 s{sT3}, s{sT3}, {PB}\ns_lshl_b32 s{sT0}, s{sNH}, 11\ns_add_u32 s{sT3}, s{sT3}, s{sT0}\ns_lshl_b32 s{sT2}, s{sT2}, 13')
    vQ=136; vK=152; kmreg=[28,32,36,8]; T0,T1,T2=16,20,24
    A(f's_lshl_b32 s{sT0}, s{sNH}, 12\ns_add_u32 s{sT0}, s{sT0}, s{sT2}\ns_add_u32 s{sT0}, s{sT0}, {QX}')
    for f in range(4): A(f'buffer_load_dwordx4 {vr(vQ+4*f,4)}, v{vL16}, {WS}, s{sT0} offen offset:{1024*f} sc1')
    A(f's_add_u32 s{sT0}, s{sT2}, {KXG}')
    for f in range(4): A(f'buffer_load_dwordx4 {vr(vK+4*f,4)}, v{vL16}, {WS}, s{sT0} offen offset:{1024*f} sc1')
    A(f's_add_u32 s{sT0}, s{sT2}, {KMG}\nv_or_b32 v{vT0}, 128, v{vL16}')
    for f in range(4): A(f'buffer_load_dwordx4 {vr(kmreg[f],4)}, v{vT0}, {WS}, s{sT0} offen offset:{1024*f} sc1')
    for i in range(4): A(f'v_mov_b32 v{T0+i}, 0')
    A(f's_mov_b64 exec, {sr(sLO,2)}')
    for i in range(4): A(f'v_mov_b32 v{T0+i}, 0xf149f2ca')
    A('s_mov_b64 exec, -1')
    A(f'v_lshrrev_b32 v15, 4, v0\nv_lshlrev_b32 v15, 2, v15\nv_and_b32 v{vT1}, 15, v0\nv_sub_u32 v{vT1}, v{vT1}, v15\nv_mov_b32 v15, 0xf149f2ca')
    A(f's_cmp_eq_u32 s{sNH}, 1\ns_cbranch_scc1 L_PT1')
    for r in range(4): A(f'v_cmp_gt_i32 vcc, {r}, v{vT1}\nv_mov_b32 v{T2+r}, v15\ns_nop 0\nv_cndmask_b32 v{T1+r}, 0, v15, vcc')
    A('s_branch L_PT2')
    A('L_PT1:')
    for r in range(4): A(f'v_cmp_gt_i32 vcc, {r}, v{vT1}\nv_mov_b32 v{T1+r}, 0\ns_nop 0\nv_cndmask_b32 v{T2+r}, 0, v15, vcc')
    A('L_PT2:')
    A('s_waitcnt vmcnt(0)')
    for f in range(4):
        A(f'{MF} {vr(T0,4)}, {vr(kmreg[f],4)}, {vr(vQ+4*f,4)}, {vr(T0,4)}')
        A(f'{MF} {vr(T1,4)}, {vr(vK+4*f,4)}, {vr(vQ+4*f,4)}, {vr(T1,4)}')
    A(f's_cmp_eq_u32 s{sNH}, 0\ns_cbranch_scc1 L_PT3')
    A(f's_add_u32 s{sT0}, s{sT2}, {KXG+4096}')
    for f in range(4): A(f'buffer_load_dwordx4 {vr(vK+4*f,4)}, v{vL16}, {WS}, s{sT0} offen offset:{1024*f} sc1')
    A('s_waitcnt vmcnt(0)')
    for f in range(4): A(f'{MF} {vr(T2,4)}, {vr(vK+4*f,4)}, {vr(vQ+4*f,4)}, {vr(T2,4)}')
    A('L_PT3:')
    A.nop(8)
    S=16; mx=8; t1=9
    A(f'v_max3_f32 v{mx}, v{S}, v{S+1}, v{S+2}\nv_max3_f32 v{t1}, v{S+3}, v{S+4}, v{S+5}\nv_max3_f32 v{mx}, v{mx}, v{S+6}, v{S+7}\nv_max3_f32 v{t1}, v{t1}, v{S+8}, v{S+9}\nv_max3_f32 v{mx}, v{mx}, v{S+10}, v{S+11}\nv_max_f32 v{mx}, v{mx}, v{t1}')
    A(f'v_mov_b32 v{t1}, v{mx}\ns_nop 1\nv_permlane32_swap_b32 v{mx}, v{t1}\ns_nop 1\nv_max_f32 v{mx}, v{mx}, v{t1}')
    A(f'v_mov_b32 v{t1}, v{mx}\ns_nop 1\nv_permlane16_swap_b32 v{mx}, v{t1}\ns_nop 1\nv_max_f32 v{mx}, v{mx}, v{t1}')
    A(f'v_mul_f32 v{mx}, s{sCEXP}, v{mx}')
    for i in range(12): A(f'v_fma_f32 v{S+i}, v{S+i}, s{sCEXP}, -v{mx}')
    for i in range(12): A(f'v_exp_f32 v{S+i}, v{S+i}')
    A('s_nop 0')
    A(f'v_add_f32 v{mx}, v{S}, v{S+1}')
    for i in range(2,12): A(f'v_add_f32 v{mx}, v{mx}, v{S+i}')
    A(f'v_mov_b32 v{t1}, v{mx}\ns_nop 1\nv_permlane32_swap_b32 v{mx}, v{t1}\ns_nop 1\nv_add_f32 v{mx}, v{mx}, v{t1}')
    A(f'v_mov_b32 v{t1}, v{mx}\ns_nop 1\nv_permlane16_swap_b32 v{mx}, v{t1}\ns_nop 1\nv_add_f32 v{mx}, v{mx}, v{t1}')
    A(f'v_rcp_f32 v{mx}, v{mx}\ns_nop 0')
    for i in range(12): A(f'v_mul_f32 v{S+i}, v{S+i}, v{mx}')
    o=28
    A(f'v_cvt_pk_bf16_f32 v{o}, v{T1}, v{T1+1}\nv_cvt_pk_bf16_f32 v{o+1}, v{T1+2}, v{T1+3}\nv_cvt_pk_bf16_f32 v{o+2}, v{T2}, v{T2+1}\nv_cvt_pk_bf16_f32 v{o+3}, v{T2+2}, v{T2+3}')
    A(f'v_cvt_pk_bf16_f32 v{o+4}, v{T0}, v{T0+1}\nv_cvt_pk_bf16_f32 v{o+5}, v{T0+2}, v{T0+3}\nv_cvt_pk_bf16_f32 v{o+6}, v{T0}, v{T0+1}\nv_cvt_pk_bf16_f32 v{o+7}, v{T0+2}, v{T0+3}\ns_nop 1')
    A(f'v_permlane32_swap_b32 v{o+6}, v{o+4}\nv_permlane32_swap_b32 v{o+7}, v{o+5}\nv_lshrrev_b32 v8, 1, v{vL16}\ns_nop 1')
    lstore(A,[f'buffer_store_dwordx4 {vr(o,4)}, v{vL16}, {WS}, s{sT3} offen', f'buffer_store_dwordx2 {vr(o+4,2)}, v8, {WS}, s{sT3} offen offset:1024'])
    reload()
    A('s_waitcnt vmcnt(8)')
    A(f's_lshl_b32 s{sT0}, s{sXC}, 2\ns_add_u32 s{sT0}, s{sT0}, s{w}\ns_lshl_b32 s{sT0}, s{sT0}, 6\ns_add_u32 s{sT0}, s{sT0}, s{sPn}\ns_lshl_b32 s{sT0}, s{sT0}, 1\ns_add_u32 s{sT0}, s{sT0}, s{sNH}\ns_lshl_b32 s{sT0}, s{sT0}, 2\ns_add_u32 s{sT0}, s{sT0}, {FLG+F2o}\ns_add_u32 s{sT1}, s{sPn}, 1')
    A(f's_mov_b64 exec, 1\nv_mov_b32 v8, s{sT1}\nv_mov_b32 v9, 0')
    lstore(A,[f'buffer_store_dword v8, v9, {WS}, s{sT0} offen'])
    A(f's_mov_b64 exec, -1\ns_add_u32 s{sPn}, s{sPn}, 16\ns_branch L_XP')
    A('L_XP_DONE:')
    bdump(16)
    if P.get('xp_tail'): P['xp_tail'](A)
    A('s_waitcnt vmcnt(0) lgkmcnt(0)\ns_endpgm')

def gen_bv(A,P):
    vL16=1; vFL=2; vFGA=3; vFGO=4; vFGS=5; vFGV=6; vOBw=7; vT0=8; vT1=9; vT2=10; vT3=11; vFINo=12; vG4=13; vORw=14; vFDa=15
    vVX=16
    vAC=48
    vVM=80
    vFD=96
    vG=104; FX=[82,83,86,87]
    def G4(t,ct): return vr(vG+(t*4+ct)*4,4)
    sH=78; sVWs=79; sOBs=80; sOBr=81; sFINs=82; sGs=83; sF3s=84; sFV=85; sU1=86; sU3=87; sPBs=88; sSD=89; sVMs=98; sVI=99
    w=sW; i=sS
    A('L_BV:')
    A(f's_setprio {P.get("PBV",2)}')
    binit,bst,bacc,bdump=mk_bst(A,P,'V',9)
    binit()
    A(f's_lshl_b32 s{sT0}, s{w}, 2\ns_add_u32 s{sT0}, s{sT0}, {L_FL}\nv_mov_b32 v{vFL}, s{sT0}')
    A(f'v_and_b32 v{vOBw}, 7, v0\nv_lshlrev_b32 v{vOBw}, 5, v{vOBw}\nv_bfe_u32 v{vT1}, v0, 4, 1\nv_lshl_add_u32 v{vOBw}, v{vT1}, 4, v{vOBw}\nv_lshrrev_b32 v{vT1}, 5, v0\nv_lshl_add_u32 v{vOBw}, v{vT1}, 18, v{vOBw}\nv_bfe_u32 v{vT2}, v0, 3, 1\nv_lshl_add_u32 v{vOBw}, v{vT2}, 17, v{vOBw}')
    A(f'v_lshlrev_b32 v{vORw}, 10, v{vT1}\nv_and_b32 v{vT2}, 31, v0\nv_lshl_add_u32 v{vORw}, v{vT2}, 3, v{vORw}\ns_lshl_b32 s{sT0}, s{w}, 8\ns_add_u32 s{sT0}, s{sT0}, {L_OR}\nv_add_u32 v{vORw}, s{sT0}, v{vORw}')
    A(f'v_lshrrev_b32 v{vT1}, 4, v0')
    A(f'v_lshlrev_b32 v{vFINo}, 11, v{vT1}\nv_and_b32 v{vT0}, 7, v0\nv_lshlrev_b32 v{vT2}, 1, v{vT0}\nv_add_u32 v{vFINo}, v{vFINo}, v{vT2}\nv_lshlrev_b32 v{vG4}, 2, v{vT1}')
    A(f'v_lshrrev_b32 v{vT1}, 3, v0\nv_lshlrev_b32 v{vFDa}, 10, v{vT1}\nv_lshlrev_b32 v{vT0}, 4, v{vT0}\nv_add_u32 v{vFDa}, v{vFDa}, v{vT0}\ns_lshl_b32 s{sT0}, s{w}, 8\nv_add_u32 v{vFDa}, s{sT0}, v{vFDa}')
    A(f'v_mov_b32 v{vFGA}, {FLG}\nv_lshlrev_b32 v{vT0}, 2, v0')
    A(f's_mul_i32 s{sT0}, s{sXC}, 384\ns_lshl_b32 s{sT1}, s{w}, 5\ns_add_u32 s{sT0}, s{sT0}, s{sT1}\ns_add_u32 s{sT0}, s{sT0}, {FLG+F1o+256}\ns_mov_b64 exec, 0xff\nv_add_u32 v{vFGA}, s{sT0}, v{vT0}')
    A(f's_lshl_b32 s{sT0}, s{sXC}, 8\ns_lshl_b32 s{sT1}, s{w}, 6\ns_add_u32 s{sT0}, s{sT0}, s{sT1}\ns_add_u32 s{sT0}, s{sT0}, {FLG+FKo}\ns_mov_b64 exec, 0xff00\nv_bfe_u32 v{vT1}, v0, 1, 2\nv_lshlrev_b32 v{vT1}, 4, v{vT1}\nv_and_b32 v{vT2}, 1, v0\nv_lshl_add_u32 v{vT1}, v{vT2}, 2, v{vT1}\nv_add_u32 v{vFGA}, s{sT0}, v{vT1}')
    A(f's_lshl_b32 s{sT0}, s{sXC}, 4\ns_add_u32 s{sT0}, s{sT0}, s{sRL}\ns_lshl_b32 s{sVMs}, s{sT0}, 13\ns_lshl_b32 s{sT0}, s{sT0}, 5\ns_lshl_b32 s{sT1}, s{w}, 3\ns_add_u32 s{sT0}, s{sT0}, s{sT1}\ns_add_u32 s{sT0}, s{sT0}, {FLG+FMo-64}\ns_mov_b64 exec, 0x30000\nv_add_u32 v{vFGA}, s{sT0}, v{vT0}')
    A(f's_lshl_b32 s{sT1}, s{w}, 11\ns_add_u32 s{sVMs}, s{sVMs}, s{sT1}\ns_add_u32 s{sVMs}, s{sVMs}, {VMG}')
    A(f's_lshl_b32 s{sT0}, s{sXC}, 11\ns_lshl_b32 s{sT1}, s{w}, 9\ns_add_u32 s{sT0}, s{sT0}, s{sT1}\ns_add_u32 s{sT0}, s{sT0}, {FLG+F2o-96}\ns_mov_b64 exec, 0x3000000\nv_add_u32 v{vFGA}, s{sT0}, v{vT0}')
    A(f's_lshr_b32 s{sT0}, s{sXC}, 1\ns_lshl_b32 s{sT0}, s{sT0}, 2\ns_add_u32 s{sT0}, s{sT0}, {FLG+FGo}\ns_mov_b64 exec, 0x4000000\nv_mov_b32 v{vFGA}, s{sT0}')
    A(f's_lshl_b32 s{sT0}, s{sXC}, 4\ns_add_u32 s{sT0}, s{sT0}, s{sRL}\ns_lshl_b32 s{sT0}, s{sT0}, 7\ns_lshr_b32 s{sT1}, s{sXC}, 2\ns_lshl_b32 s{sT1}, s{sT1}, 3\ns_add_u32 s{sT0}, s{sT0}, s{sT1}\ns_add_u32 s{sT0}, s{sT0}, {FLG+F3o}')
    A(f's_mov_b32 exec_lo, 0\ns_mov_b32 exec_hi, 0xffff\nv_bfe_u32 v{vT1}, v0, 1, 3\nv_lshlrev_b32 v{vT1}, 4, v{vT1}\nv_and_b32 v{vT2}, 1, v0\nv_lshlrev_b32 v{vT2}, 2, v{vT2}\nv_add_u32 v{vT1}, v{vT1}, v{vT2}\nv_add_u32 v{vFGA}, s{sT0}, v{vT1}\ns_mov_b64 exec, -1')
    A(f's_lshl_b32 s{sH}, s{sXC}, 2\ns_add_u32 s{sH}, s{sH}, s{w}\ns_lshl_b32 s{sPBs}, s{sH}, 12\ns_add_u32 s{sPBs}, s{sPBs}, {PB}\ns_lshl_b32 s{sH}, s{sH}, 13')
    A(f's_lshl_b32 s{sVWs}, s{sXC}, 4\ns_add_u32 s{sVWs}, s{sVWs}, s{sRL}\ns_lshl_b32 s{sOBr}, s{sVWs}, 13\ns_add_u32 s{sOBr}, s{sOBr}, {OB}\ns_lshl_b32 s{sVWs}, s{sVWs}, 2\ns_add_u32 s{sVWs}, s{sVWs}, s{w}\ns_lshl_b32 s{sFV}, s{sVWs}, 2\ns_add_u32 s{sFV}, s{sFV}, {FLG+FVo}\ns_lshl_b32 s{sVWs}, s{sVWs}, 12\ns_add_u32 s{sVWs}, s{sVWs}, {VWG}')
    A(f's_lshr_b32 s{sT0}, s{w}, 1\ns_lshl_b32 s{sT0}, s{sT0}, 6\ns_add_u32 s{sT0}, s{sT0}, s{sRL}\ns_lshl_b32 s{sOBs}, s{sT0}, 13\ns_lshl_b32 s{sF3s}, s{sT0}, 7\ns_lshl_b32 s{sT1}, s{sXC}, 10\ns_add_u32 s{sOBs}, s{sOBs}, s{sT1}\ns_and_b32 s{sT1}, s{w}, 1\ns_lshl_b32 s{sT1}, s{sT1}, 9\ns_add_u32 s{sOBs}, s{sOBs}, s{sT1}\ns_add_u32 s{sOBs}, s{sOBs}, {OB}')
    A(f's_lshl_b32 s{sT1}, s{sXC}, 4\ns_add_u32 s{sF3s}, s{sF3s}, s{sT1}\ns_lshl_b32 s{sT1}, s{w}, 2\ns_add_u32 s{sF3s}, s{sF3s}, s{sT1}\ns_add_u32 s{sF3s}, s{sF3s}, {FLG+F3o}')
    A(f's_lshl_b32 s{sFINs}, s{sXC}, 13\ns_lshl_b32 s{sT0}, s{sRL}, 7\ns_add_u32 s{sFINs}, s{sFINs}, s{sT0}\ns_lshl_b32 s{sT0}, s{w}, 5\ns_add_u32 s{sFINs}, s{sFINs}, s{sT0}')
    A(f's_lshl_b32 s{sGs}, s{sXC}, 4\ns_add_u32 s{sGs}, s{sGs}, {GR}')
    sa=sS; so=sS1; sf=100; sk=101; dA=72; dO=73; dF=74; sP3=75
    A(f's_mov_b32 s{sa}, 0\ns_mov_b32 s{so}, 0\ns_mov_b32 s{sf}, 0\ns_mov_b32 s{sk}, 0\ns_mov_b32 s{sP3}, 0')
    def skip(d,lab): A(f's_cmp_eq_u32 s{d}, 0\ns_cbranch_scc1 {lab}')
    def wv(n):
        l=A.newlabel('WV')
        A(f's_waitcnt vmcnt({n})\ns_cmp_eq_u32 s{sSD}, 1\ns_cbranch_scc1 {l}\ns_waitcnt vmcnt(0)\n{l}:')
    def f3pub():
        l=A.newlabel('F3')
        A(f's_cmp_eq_u32 s{sP3}, 0\ns_cbranch_scc1 {l}')
        A(f's_mov_b64 exec, 0xf\nv_mov_b32 v{vT1}, s{sP3}\nv_lshlrev_b32 v{vT2}, 7, v{vL16}\nbuffer_store_dword v{vT1}, v{vT2}, {WS}, s{sF3s} offen sc1\ns_mov_b64 exec, -1\ns_mov_b32 s{sP3}, 0\n{l}:')
    def fload():
        A(f'v_mov_b32 v{vFGS}, v{vFGA}\nv_mov_b32 v{vFGO}, 0')
        A(f's_add_u32 s{sT0}, s{sa}, 1\ns_mov_b64 exec, 0xff\nv_mov_b32 v{vFGO}, s{sT0}')
        A(f's_add_u32 s{sT0}, s{sk}, 1\ns_mov_b64 exec, 0xff00\nv_mov_b32 v{vFGO}, s{sT0}')
        A(f's_add_u32 s{sT0}, s{so}, 1\ns_mov_b64 exec, 0x3030000\nv_mov_b32 v{vFGO}, s{sT0}\ns_min_u32 s{sT0}, s{so}, 63\ns_lshl_b32 s{sT0}, s{sT0}, 3\ns_mov_b64 exec, 0x3000000\nv_add_u32 v{vFGS}, s{sT0}, v{vFGA}')
        A(f's_min_u32 s{sT0}, s{sf}, 63\ns_lshl_b32 s{sT0}, s{sT0}, 4\ns_mov_b64 exec, 0x4000000\nv_add_u32 v{vFGS}, s{sT0}, v{vFGA}')
        A(f's_add_u32 s{sT0}, s{sf}, 1\ns_mov_b32 exec_hi, 0xffff\nv_mov_b32 v{vFGO}, s{sT0}\ns_mov_b64 exec, -1')
        A(f'buffer_load_dword v{vFGV}, v{vFGS}, {WS}, 0 offen sc1')
    pb=vVX+16
    fload()
    A('s_waitcnt vmcnt(0)')
    A('L_BV_LOOP:')
    bst(0)
    A(f'v_cmp_lt_u32 vcc, v{vFGV}, v{vFGO}')
    A(f's_mov_b32 s{dA}, 0\ns_mov_b32 s{dO}, 0\ns_mov_b32 s{dF}, 0')
    A(f's_and_b32 s{sT0}, vcc_lo, 0xff00\ns_cmp_lg_u32 s{sT0}, 0\ns_cbranch_scc1 L_D0\ns_add_u32 s{sk}, s{sk}, 1\nv_mov_b32 v{vT1}, s{sk}\nds_write_b32 v{vFL}, v{vT1} offset:{F_PGO}\nL_D0:')
    A(f's_and_b32 s{sT0}, vcc_lo, 0xff\ns_cmp_lg_u32 s{sT0}, 0\ns_cbranch_scc1 L_D1\ns_add_u32 s{sT0}, s{so}, 8\ns_add_u32 s{sT1}, s{sk}, 7\ns_min_u32 s{sT0}, s{sT0}, s{sT1}\ns_cmp_ge_u32 s{sa}, s{sT0}\ns_cbranch_scc1 L_D1\ns_mov_b32 s{dA}, 1\nL_D1:')
    A(f's_and_b32 s{sT0}, vcc_lo, 0x3030000\ns_cmp_lg_u32 s{sT0}, 0\ns_cbranch_scc1 L_D2\ns_cmp_ge_u32 s{so}, s{sa}\ns_cbranch_scc1 L_D2\ns_mov_b32 s{dO}, 1\nL_D2:')
    A(f's_and_b32 s{sT0}, vcc_lo, 0x4000000\ns_and_b32 s{sT1}, vcc_hi, 0xffff\ns_or_b32 s{sT0}, s{sT0}, s{sT1}\ns_cmp_lg_u32 s{sT0}, 0\ns_cbranch_scc1 L_D3\ns_mov_b32 s{dF}, 1\nL_D3:')
    if P.get('noOP'): A(f's_mov_b32 s{dO}, 0\ns_mov_b32 s{dF}, 0\ns_mov_b32 s{so}, s{sk}\ns_mov_b32 s{sf}, s{sk}')
    if P.get('noF'): A(f's_mov_b32 s{dF}, 0\ns_mov_b32 s{sf}, s{so}')
    A(f's_add_u32 s{sT0}, s{dA}, s{dO}\ns_add_u32 s{sT0}, s{sT0}, s{dF}\ns_cmp_eq_u32 s{sT0}, 3\ns_cselect_b32 s{sSD}, 1, 0\ns_cmp_lg_u32 s{sT0}, 0\ns_cbranch_scc1 L_BVGO')
    A('s_waitcnt vmcnt(0)')
    f3pub()
    A(f's_cmp_ge_u32 s{sf}, 64\ns_cbranch_scc1 L_BVEND')
    A(f's_sleep {P.get("BVS",8)}')
    fload()
    A('s_waitcnt vmcnt(0)')
    spin(A,'L_BV_LOOP')
    A('L_BVGO:')
    bst(1)
    skip(dA,'L_BV1')
    A(f's_and_b32 s{sT0}, s{sa}, 15\ns_lshl_b32 s{sT0}, s{sT0}, 18\ns_add_u32 s{sT0}, s{sT0}, s{sH}\ns_add_u32 s{sT0}, s{sT0}, {VXG}\ns_add_u32 s{sT1}, s{sT0}, 4096')
    for k in range(8): A(f'buffer_load_dwordx4 {vr(vVX+4*k,4)}, v{vL16}, {WS}, s{sT0 if k<4 else sT1} offen offset:{1024*(k&3)} sc1')
    A('L_BV1:')
    skip(dO,'L_BV3')
    A(f's_and_b32 s{sT0}, s{so}, 15\ns_lshl_b32 s{sT0}, s{sT0}, 20\ns_add_u32 s{sT0}, s{sT0}, s{sVMs}')
    for q in range(4): A(f'buffer_load_dwordx2 {vr(vVM+4*q,2)}, v{vL16}, {WS}, s{sT0} offen offset:{1024*(q>>1)+8*(q&1)} sc1')
    A('L_BV3:')
    skip(dF,'L_BV2')
    A(f's_lshl_b32 s{sT0}, s{sf}, 20\ns_add_u32 s{sT0}, s{sT0}, s{sOBr}')
    A(f'buffer_load_dwordx4 {vr(vFD,4)}, v{vFDa}, {WS}, s{sT0} offen sc1\nbuffer_load_dwordx4 {vr(vFD+4,4)}, v{vFDa}, {WS}, s{sT0} offen offset:128 sc1')
    A(f's_lshl_b32 s{sT0}, s{sf}, 16\ns_add_u32 s{sU3}, s{sT0}, s{sFINs}\nbuffer_load_ushort v{FX[0]}, v{vFINo}, {sr(sX,4)}, s{sU3} offen\nbuffer_load_ushort v{FX[1]}, v{vFINo}, {sr(sX,4)}, s{sU3} offen offset:16')
    A(f's_lshl_b32 s{sT0}, s{sf}, 7\ns_add_u32 s{sT0}, s{sT0}, s{sGs}\nbuffer_load_dword v{FX[2]}, v{vG4}, {WS}, s{sT0} offen sc1')
    A('L_BV2:')
    skip(dA,'L_BV4a')
    wv(9)
    bst(2)
    for t in range(4):
        for kt in range(2):
            for ct in range(4):
                acc=vr(vAC+4*(4*kt+ct),4)
                A(f'{MF} {acc}, {vr(vVX+16*kt+4*t,4)}, {G4(t,ct)}, {"0" if t==0 else acc}')
    A('L_BV4a:')
    skip(dO,'L_BV4b')
    A(f's_and_b32 s{sT0}, s{so}, 15\ns_lshl_b32 s{sT0}, s{sT0}, 17\ns_add_u32 s{sT0}, s{sT0}, s{sPBs}\nv_lshrrev_b32 v{vT0}, 1, v{vL16}')
    for rt in range(2):
        A(f'buffer_load_dwordx4 {vr(pb+8*rt,4)}, v{vL16}, {WS}, s{sT0} offen offset:{2048*rt} sc1\nbuffer_load_dwordx2 {vr(pb+8*rt+4,2)}, v{vT0}, {WS}, s{sT0} offen offset:{2048*rt+1024} sc1\nv_mov_b32 v{pb+8*rt+6}, 0\nv_mov_b32 v{pb+8*rt+7}, 0')
    A('L_BV4b:')
    skip(dA,'L_BV4')
    A(f's_and_b32 s{sT0}, s{sa}, {VWRING-1}\ns_lshl_b32 s{sT0}, s{sT0}, 21\ns_add_u32 s{sT0}, s{sT0}, s{sVWs}')
    A.nop(4)
    for ct in range(4):
        for kt in range(2):
            a=vAC+4*(4*kt+ct)
            A(f'v_cvt_pk_bf16_f32 v{vVX+4*ct+2*kt}, v{a}, v{a+1}\nv_cvt_pk_bf16_f32 v{vVX+4*ct+2*kt+1}, v{a+2}, v{a+3}')
    lstore(A,[f'buffer_store_dwordx4 {vr(vVX+4*ct,4)}, v{vL16}, {WS}, s{sT0} offen offset:{1024*ct}' for ct in range(4)])
    A('L_BV4:')
    skip(dO,'L_BV4c')
    A(f's_and_b32 s{sT0}, s{so}, {VWRING-1}\ns_lshl_b32 s{sT0}, s{sT0}, 21\ns_add_u32 s{sT0}, s{sT0}, s{sVWs}')
    for ct in range(4): A(f'buffer_load_dwordx4 {vr(vVX+4*ct,4)}, v{vL16}, {WS}, s{sT0} offen offset:{1024*ct} sc1')
    A('L_BV4c:')
    bst(3)
    wv(12)
    f3pub()
    bst(4)
    skip(dF,'L_BV5')
    g=FX[2]
    A(f'v_sub_f32 v{FX[3]}, 1.0, v{g}\nv_cvt_pk_bf16_f32 v{FX[3]}, v{FX[3]}, v{FX[3]}\nv_lshlrev_b32 v{FX[3]}, 16, v{FX[3]}')
    for h in range(2):
        d=vFD+4*h; x=FX[h]
        A(f'v_permlane32_swap_b32 v{d}, v{d+2}\nv_permlane32_swap_b32 v{d+1}, v{d+3}\ns_nop 1\nv_add_f32 v{d}, v{d}, v{d+2}\nv_add_f32 v{d+1}, v{d+1}, v{d+3}\ns_nop 1\nv_permlane16_swap_b32 v{d}, v{d+1}\ns_nop 1\nv_add_f32 v{d}, v{d}, v{d+1}\ns_nop 1')
        A(f'v_add_f32_dpp v{d+1}, v{d}, v{d} row_ror:8 row_mask:0xf bank_mask:0xf')
        A(f'v_cvt_pk_bf16_f32 v{d+1}, v{d+1}, v{d+1}\nv_lshlrev_b32 v{d+2}, 16, v{d+1}\nv_lshlrev_b32 v{x}, 16, v{x}')
        A(f'v_mul_f32 v{d+2}, v{g}, v{d+2}\nv_mul_f32 v{d+3}, v{FX[3]}, v{x}\nv_cvt_pk_bf16_f32 v{d+2}, v{d+2}, v{d+3}\nv_lshlrev_b32 v{d+3}, 16, v{d+2}\nv_and_b32 v{d+2}, 0xffff0000, v{d+2}\nv_add_f32 v{d+2}, v{d+2}, v{d+3}\nv_cvt_pk_bf16_f32 v{d+2}, v{d+2}, v{d+2}')
    A(f's_mov_b64 exec, {sr(sM8,2)}\ns_add_u32 s{sT0}, s{sU3}, {AO}')
    for h in range(2):
        d=vFD+4*h
        A(f'buffer_store_short v{d+2}, v{vFINo}, {sr(sOUT,4)}, s{sU3} offen offset:{16*h}\nbuffer_store_short v{d+1}, v{vFINo}, {WS}, s{sT0} offen offset:{16*h}')
    A(f's_mov_b64 exec, -1\ns_add_u32 s{sf}, s{sf}, 1')
    A('L_BV5:')
    bst(5)
    A('s_waitcnt vmcnt(4)')
    l=A.newlabel('W5')
    A(f's_cmp_eq_u32 s{dF}, 1\ns_cbranch_scc1 {l}\ns_waitcnt vmcnt(0)\n{l}:')
    skip(dA,'L_BVF1')
    A(f's_add_u32 s{sa}, s{sa}, 1\ns_mov_b64 exec, 1\nv_mov_b32 v{vT1}, s{sa}\nv_mov_b32 v{vT2}, 0')
    lstore(A,[f'buffer_store_dword v{vT1}, v{vT2}, {WS}, s{sFV} offen'])
    A('s_mov_b64 exec, -1')
    A('L_BVF1:')
    A(f's_mov_b32 s{sU1}, s{so}\ns_add_u32 s{so}, s{so}, s{dO}')
    fload()
    bst(6); bst(7)
    skip(dO,'L_BV6w')
    for ct in range(4): A(f'v_mov_b32 v{vVM+4*ct+2}, 0\nv_mov_b32 v{vVM+4*ct+3}, 0')
    for rt in range(2):
        for ct in range(4):
            acc=vr(vAC+4*(4*rt+ct),4)
            A(f'{MF} {acc}, {vr(pb+8*rt,4)}, {vr(vVX+4*ct,4)}, 0')
    for rt in range(2):
        for ct in range(4):
            acc=vr(vAC+4*(4*rt+ct),4)
            A(f'{MF} {acc}, {vr(pb+8*rt+4,4)}, {vr(vVM+4*ct,4)}, {acc}')
    A(f'v_mov_b32 v{vT1}, {L_FL+F_ORC}')
    A('L_OCP:')
    A(f'ds_read_b128 {vr(vVX,4)}, v{vT1}\ns_waitcnt lgkmcnt(0)\nv_min3_u32 v{vT2}, v{vVX}, v{vVX+1}, v{vVX+2}\nv_min_u32 v{vT2}, v{vT2}, v{vVX+3}\nv_cmp_gt_u32 vcc, s{sU1}, v{vT2}\ns_cbranch_vccz L_OCK')
    spin(A,'L_OCP')
    A('L_OCK:')
    A(f'v_mov_b32 v{vT3}, s{so}\nv_mov_b32 v{vT1}, {L_FL+F_OR}')
    for k in range(8):
        a=vAC+4*k
        A(f'v_cvt_pk_bf16_f32 v{a}, v{a}, v{a+1}\nv_cvt_pk_bf16_f32 v{a+1}, v{a+2}, v{a+3}\nds_write_b64 v{vORw}, {vr(a,2)} offset:{2048*k}')
    A(f'ds_write_b32 v{vFL}, v{vT3} offset:{F_OR}')
    A(f'ds_read_b128 {vr(vVX+8,4)}, v{vL16} offset:{L_SELB}\nds_read_b128 {vr(vVX+12,4)}, v{vL16} offset:{L_SELB+1024}')
    A(f's_lshl_b32 s{sT0}, s{w}, 12\ns_add_u32 s{sT0}, s{sT0}, {L_OR}\nv_add_u32 v{vT2}, s{sT0}, v{vL16}')
    A('L_ORP:')
    A(f'ds_read_b128 {vr(vVX,4)}, v{vT1}\ns_waitcnt lgkmcnt(0)\nv_min3_u32 v{vT0}, v{vVX}, v{vVX+1}, v{vVX+2}\nv_min_u32 v{vT0}, v{vT0}, v{vVX+3}\nv_cmp_gt_u32 vcc, s{so}, v{vT0}\ns_cbranch_vccz L_ORK')
    spin(A,'L_ORP')
    A('L_ORK:')
    bst(7)
    for k in range(4): A(f'ds_read_b128 {vr(vAC+4*k,4)}, v{vT2} offset:{1024*k}')
    A(f's_lshl_b32 s{sT0}, s{sU1}, 20\ns_add_u32 s{sT0}, s{sT0}, s{sOBs}')
    A(f's_waitcnt lgkmcnt(0)\nds_write_b32 v{vFL}, v{vT3} offset:{F_ORC}')
    for h in range(2):
        D=vAC+16+4*h
        A(f'{MF} {vr(D,4)}, {vr(vVX+8,4)}, {vr(vAC+8*h,4)}, 0\n{MF} {vr(D,4)}, {vr(vVX+12,4)}, {vr(vAC+8*h+4,4)}, {vr(D,4)}')
    A.nop(7)
    for h in range(2):
        A(f'buffer_store_dwordx4 {vr(vAC+16+4*h,4)}, v{vOBw}, {WS}, s{sT0} offen offset:{256*h} sc1')
    A(f's_mov_b32 s{sP3}, s{so}\ns_waitcnt vmcnt(2)\ns_branch L_BV6')
    A('L_BV6w:')
    A('s_waitcnt vmcnt(0)')
    A('L_BV6:')
    bst(8); bacc()
    A('s_branch L_BV_LOOP')
    A('L_BVEND:')
    P['rt'](78,None,(vT0,vT1))
    bdump(16)
    if P.get('bbranch',True): g8_mlp.fixup(A,locals())
    A('s_waitcnt vmcnt(0) lgkmcnt(0)\ns_endpgm')
```

```python
from g11_pro import *
L_SEL=1024; L_R1=3072; L_R2=27648; L_VWM=31744
VMG=0xC000000; FMo=0xE000
SM='v_smfmac_f32_16x16x64_bf16'
def gen_ca(A,P,retry,stamp):
    vLP=0; vL16=1; vR1w=2; vFL=3; vSTP=4; vBpub=5; vT0=6; vT1=7; vF=8; vACC=16
    sCX=78; sAX=79; sBP=80; sC=84; sA=85; sB1=86; sB2=87; sVW=88; sAV=89; sKM=98; sAVo=99; sFK=100; sR2=76; sR1v=77; sFLs=101; vIX=3
    c=sWAVE
    A('L_CA:')
    A(f's_setprio {P["PCA"]}')
    n,g=vT0,vT1
    A(f'v_and_b32 v{n}, 7, v0\nv_lshrrev_b32 v{g}, 4, v0')
    A(f'v_lshlrev_b32 v{vACC}, 11, v{n}\nv_lshlrev_b32 v{vACC+1}, 4, v{g}\nv_add_u32 v{vACC}, v{vACC}, v{vACC+1}\nv_and_b32 v{vACC+1}, 8, v0\nv_lshl_add_u32 v{vACC}, v{vACC+1}, 3, v{vACC}')
    A(f'v_lshlrev_b32 v{vACC+2}, 4, v{n}\nv_and_b32 v{vACC+1}, 1, v{g}\nv_lshlrev_b32 v{vACC+1}, 3, v{vACC+1}\nv_add_u32 v{vACC+3}, v{vACC+2}, v{vACC+1}')
    A(f'v_lshrrev_b32 v{vACC+1}, 1, v{g}\nv_lshlrev_b32 v{vR1w}, 8, v{vACC+1}\nv_add_u32 v{vR1w}, v{vR1w}, v{vACC+3}\nv_and_b32 v{vACC+1}, 0x80, v{vL16}\nv_add_u32 v{vR1w}, v{vR1w}, v{vACC+1}\ns_lshl_b32 s{sT0}, s{c}, 9\ns_add_u32 s{sT0}, s{sT0}, {L_R1}\nv_add_u32 v{vR1w}, s{sT0}, v{vR1w}')
    A(f'v_lshrrev_b32 v{vBpub}, 1, v{vL16}\nv_and_b32 v{vACC+1}, 0x80, v{vL16}')
    A(f'v_lshlrev_b32 v{vACC+1}, 2, v{vACC+1}\nv_lshlrev_b32 v{vLP}, 7, v{g}\nv_add_u32 v{vLP}, v{vLP}, v{vACC+2}\nv_add_u32 v{vLP}, v{vLP}, v{vACC+1}')
    A(f's_lshl_b32 s{sFLs}, s{c}, 2\ns_add_u32 s{sFLs}, s{sFLs}, {L_FL+F_VWM}\nv_mov_b32 v{vIX}, 0xeeee\ns_mov_b64 exec, {sr(sM8,2)}\nv_mov_b32 v{vIX}, 0x4444\ns_mov_b64 exec, -1')
    A(f's_lshl_b32 s{sCX}, s{sXC}, 16\ns_lshl_b32 s{sT0}, s{c}, 11\ns_add_u32 s{sCX}, s{sCX}, s{sT0}\ns_add_u32 s{sCX}, s{sCX}, {CBUF}')
    A(f's_mul_i32 s{sAX}, s{sXC}, 98304\ns_add_u32 s{sAX}, s{sAX}, {ABUF}')
    A(f's_lshr_b32 s{sT0}, s{sRL}, 2\ns_mul_i32 s{sAVo}, s{sT0}, 6144\ns_and_b32 s{sT0}, s{sRL}, 1\ns_lshl_b32 s{sT0}, s{sT0}, 10\ns_add_u32 s{sAVo}, s{sAVo}, s{sT0}\ns_bfe_u32 s{sT0}, s{sRL}, 0x10001\ns_lshl_b32 s{sT0}, s{sT0}, 7\ns_add_u32 s{sAVo}, s{sAVo}, s{sT0}\ns_lshl_b32 s{sT0}, s{c}, 9\ns_add_u32 s{sAVo}, s{sAVo}, s{sT0}\ns_add_u32 s{sAVo}, s{sAVo}, 4096')
    A(f's_lshl_b32 s{sT0}, s{sXC}, 4\ns_add_u32 s{sT0}, s{sT0}, s{sRL}\ns_lshl_b32 s{sT0}, s{sT0}, 3\ns_add_u32 s{sT0}, s{sT0}, s{c}\ns_lshl_b32 s{sKM}, s{sT0}, 10\ns_add_u32 s{sKM}, s{sKM}, {VMG}\ns_lshl_b32 s{sFK}, s{sT0}, 2\ns_add_u32 s{sFK}, s{sFK}, {FLG+FMo}')
    A(f's_lshl_b32 s{sT2}, s{sRL}, 16\ns_add_u32 s{sT2}, s{sT2}, s{sBB}\ns_lshl_b32 s{sT3}, s{sXC}, 10\ns_add_u32 s{sT2}, s{sT2}, s{sT3}\ns_and_b32 s{sT3}, s{c}, 1\ns_lshl_b32 s{sT3}, s{sT3}, 9\ns_add_u32 s{sT2}, s{sT2}, s{sT3}')
    for d in range(2):
        A(f's_and_b32 s{sT0}, s{c}, 6\ns_add_u32 s{sT0}, s{sT0}, {d}')
        for pg in range(2):
            bi_calc(A,sBP+2*d+pg,sT0,pg); A(f's_add_u32 s{sBP+2*d+pg}, s{sBP+2*d+pg}, s{sT2}')
    A(f's_lshl_b32 s{sVW}, s{c}, 10\ns_add_u32 s{sVW}, s{sVW}, {L_VWM}')
    A(f's_and_b32 s{sR2}, s{c}, 1\ns_lshl_b32 s{sR1v}, s{sR2}, 12\ns_lshl_b32 s{sR2}, s{sR2}, 11\ns_add_u32 s{sR1v}, s{sR1v}, {L_R1+16384}\ns_add_u32 s{sR2}, s{sR2}, {L_R2}')
    srd(A,sT,34,16384)
    A(f's_lshl_b32 s{sT0}, s{c}, 8')
    for q in range(2): A(f'buffer_load_dwordx4 {vr(vF+4*q,4)}, v{vACC}, {sr(sT,4)}, s{sT0} offen offset:{128*q}')
    A('s_waitcnt vmcnt(0)')
    for i in range(8): A(f'v_min_u32 v{vF+i}, -2, v{vF+i}')
    A(f's_mov_b32 s{sS}, 0')
    def setup():
        A(f's_add_u32 s{sS1}, s{sS}, 1\nv_mov_b32 v{vSTP}, s{sS1}\ns_and_b32 s{sT0}, s{sS}, 3')
        A(f's_lshl_b32 s{sT1}, s{sT0}, 14\ns_add_u32 s{sC}, s{sCX}, s{sT1}\ns_mul_i32 s{sT1}, s{sT0}, 24576\ns_add_u32 s{sT1}, s{sT1}, s{sAX}\ns_add_u32 s{sAV}, s{sT1}, s{sAVo}')
        A(f's_lshr_b32 s{sT2}, s{c}, 1\ns_mul_i32 s{sT2}, s{sT2}, 6144\ns_add_u32 s{sA}, s{sT1}, s{sT2}\ns_add_u32 s{sA}, s{sA}, 4096')
        A(f's_cmp_ge_u32 s{sT0}, 2\ns_cselect_b32 s{sB1}, s{sBP+1}, s{sBP}\ns_cselect_b32 s{sB2}, s{sBP+3}, s{sBP+2}\ns_lshl_b32 s{sT1}, s{sT0}, 20\ns_add_u32 s{sB1}, s{sB1}, s{sT1}\ns_add_u32 s{sB2}, s{sB2}, s{sT1}')
    def check(b,bad):
        A(f'v_max3_u32 v{vT0}, v{b}, v{b+1}, v{b+2}\nv_max_u32 v{vT0}, v{vT0}, v{b+3}\nv_cmp_eq_u32 vcc, -1, v{vT0}\ns_cbranch_vccnz {bad}')
    def cloads(qs):
        for q in qs: A(f'buffer_load_dwordx4 {vr(vF+4*q,4)}, v{vLP}, {WS}, s{sC} offen offset:{1024*q} sc1')
    def pack(a): A(f'v_cvt_pk_bf16_f32 v{a}, v{a}, v{a+1}\nv_cvt_pk_bf16_f32 v{a+1}, v{a+2}, v{a+3}')
    vKC=vACC+20; vPA=vACC+22
    def zacc():
        for i in range(24): A(f'v_mov_b32 v{vACC+i}, 0')
    setup()
    zacc()
    A('s_barrier')
    A('s_branch L_CW0')
    A('L_CA_LOOP:')
    setup()
    zacc()
    A('s_barrier')
    stamp(0)
    delay(A,P['DC'])
    cloads(range(2))
    stamp(1)
    for q in range(2):
        A(f'L_CW{q}:\ns_waitcnt vmcnt({1-q})')
        check(vF+4*q,f'L_CR{q}')
        if q==0: stamp(2)
        retry.append((f'L_CR{q}',[(lambda qq=q: cloads(range(qq,2)))],f'L_CW{q}',1))
        for tl in range(6):
            A(f'{SM} {vr(vACC+4*tl,4)}, {vr(vF+4*q,4)}, {vr(vWF+(tl*2+q)*8,8)}, v{vIX}')
    stamp(3)
    A(f'ds_read_b128 {vr(vF,4)}, v{vL16} offset:{L_SEL}')
    A.nop(2)
    for tl in range(6):
        pack(vACC+4*tl)
        A(f'ds_write_b64 v{vR1w}, {vr(vACC+4*tl,2)} offset:{4096*tl}')
    A(f'v_add_u32 v{vT1}, s{sR1v}, v{vL16}')
    A('s_waitcnt lgkmcnt(0)\ns_barrier')
    stamp(4)
    A(f's_cmp_ge_u32 s{c}, 2\ns_cbranch_scc1 L_CA_NV')
    for rd in range(4): A(f'ds_read_b128 {vr(vACC+4*rd,4)}, v{vT1} offset:{1024*rd}')
    A(f'v_and_b32 v{vPA}, 0x70, v{vL16}\nv_bfe_u32 v{vT0}, v{vL16}, 9, 1\nv_lshl_add_u32 v{vPA}, v{vT0}, 8, v{vPA}\nv_bfe_u32 v{vT0}, v{vL16}, 8, 1\nv_lshl_add_u32 v{vPA}, v{vT0}, 3, v{vPA}')
    D=vACC+16
    for rd in range(4):
        A(f's_waitcnt lgkmcnt({0 if P["stamps"] else 3-rd})\n{MF} {vr(D,4)}, {vr(vACC+4*rd,4)}, {vr(vF,4)}, {"0" if rd==0 else vr(D,4)}')
    A(f's_mov_b64 exec, {sr(sM8,2)}')
    A.nop(7)
    A(f'v_cvt_pk_bf16_f32 v{vKC}, v{D}, v{D+1}\nv_cvt_pk_bf16_f32 v{vKC+1}, v{D+2}, v{D+3}\nv_min_u32 v{vKC}, -2, v{vKC}\nv_min_u32 v{vKC+1}, -2, v{vKC+1}')
    lstore(A,[f'buffer_store_dwordx2 {vr(vKC,2)}, v{vPA}, {WS}, s{sAV} offen'])
    A('s_mov_b64 exec, -1')
    stamp(5)
    delay(A,P['DV'])
    A('s_branch L_CA_VG')
    A('L_CA_NV:')
    delay(A,P['DV']+P['DVR'])
    A('L_CA_VG:')
    vload=lambda u: A(f'buffer_load_dwordx4 {vr(vF+4*u,4)}, v{vL16}, {WS}, s{sA} offen offset:{1024*u} sc1')
    stamp(7)
    vload(0); vload(1)
    for u in range(2):
        A(f'L_VW{u}:\ns_waitcnt vmcnt({1-u})')
        check(vF+4*u,f'L_VR{u}')
        retry.append((f'L_VR{u}',[(lambda uu=uu: vload(uu)) for uu in range(u,2)],f'L_VW{u}',1<<10))
        for ct in range(2):
            lo=vACC+8*ct; hi=lo+4
            A(f'{MF} {vr(lo,4)}, {vr(vF+4*u,4)}, {G(u,ct)}, {"0" if u==0 else vr(lo,4)}')
            A(f'{MF} {vr(hi,4)}, {vr(vF+4*u,4)}, {G(u+2,ct)}, {"0" if u==0 else vr(hi,4)}')
    stamp(8)
    A(f'v_add_u32 v{vT1}, s{sVW}, v{vL16}')
    A.nop(5)
    d=vACC+16
    for ct in range(2):
        lo=vACC+8*ct
        A(f'v_cvt_pk_bf16_f32 v{d+2*ct}, v{lo}, v{lo+1}\nv_cvt_pk_bf16_f32 v{d+2*ct+1}, v{lo+2}, v{lo+3}')
    A(f's_mov_b64 exec, {sr(sHI,2)}')
    for ct in range(2):
        hi=vACC+8*ct+4
        A(f'v_cvt_pk_bf16_f32 v{d+2*ct}, v{hi}, v{hi+1}\nv_cvt_pk_bf16_f32 v{d+2*ct+1}, v{hi+2}, v{hi+3}')
    A('s_mov_b64 exec, -1')
    A(f'v_mov_b32 v{vT0}, s{sFLs}\nds_write_b128 v{vT1}, {vr(d,4)}\nds_write_b32 v{vT0}, v{vSTP}')
    stamp(9)
    A(f's_and_b32 s{sT1}, s{sS}, 15\ns_lshl_b32 s{sT1}, s{sT1}, 20\ns_add_u32 s{sT1}, s{sT1}, s{sKM}')
    lstore(A,[f'buffer_store_dwordx4 {vr(d,4)}, v{vL16}, {WS}, s{sT1} offen'])
    A(f's_cmp_ge_u32 s{c}, 2\ns_cbranch_scc1 L_CA_NP')
    A(f'v_mov_b32 v{vT0}, -1\nv_mov_b32 v{vT1}, -1')
    A(f's_add_u32 s{sT0}, s{sS}, 3\ns_and_b32 s{sT0}, s{sT0}, 3\ns_mul_i32 s{sT0}, s{sT0}, 24576\ns_add_u32 s{sT0}, s{sT0}, s{sAX}\ns_add_u32 s{sT0}, s{sT0}, s{sAVo}')
    A(f's_mov_b64 exec, {sr(sM8,2)}')
    lstore(A,[f'buffer_store_dwordx2 {vr(vT0,2)}, v{vPA}, {WS}, s{sT0} offen'])
    A('s_mov_b64 exec, -1')
    A('L_CA_NP:')
    A(f's_waitcnt vmcnt(0)\ns_mov_b64 exec, 1\nv_mov_b32 v{vT0}, 0')
    lstore(A,[f'buffer_store_dword v{vSTP}, v{vT0}, {WS}, s{sFK} offen'])
    A('s_mov_b64 exec, -1')
    A(f's_cmp_eq_u32 s{sS}, 63\ns_cbranch_scc1 L_CA_CP')
    A(f'ds_read_b128 {vr(vF,4)}, v{vL16} offset:{L_SEL}\nds_read_b128 {vr(vF+4,4)}, v{vL16} offset:{L_SEL+1024}\nv_add_u32 v{vT1}, s{sR2}, v{vL16}\ns_waitcnt lgkmcnt(0)')
    A('s_barrier')
    stamp(10)
    A(f'ds_read_b128 {vr(vACC,4)}, v{vT1}\nds_read_b128 {vr(vACC+4,4)}, v{vT1} offset:1024')
    D=vACC+8
    A(f's_waitcnt lgkmcnt({0 if P["stamps"] else 1})\n{MF} {vr(D,4)}, {vr(vF,4)}, {vr(vACC,4)}, 0\ns_waitcnt lgkmcnt(0)\n{MF} {vr(D,4)}, {vr(vF+4,4)}, {vr(vACC+4,4)}, {vr(D,4)}')
    A.nop(8)
    A(f'v_cvt_pk_bf16_f32 v{D+4}, v{D}, v{D+1}\nv_cvt_pk_bf16_f32 v{D+5}, v{D+2}, v{D+3}\nv_min_u32 v{D+4}, -2, v{D+4}\nv_min_u32 v{D+5}, -2, v{D+5}')
    A(f'buffer_store_dwordx2 {vr(D+4,2)}, v{vBpub}, {WS}, s{sB1} offen sc1')
    A(f'buffer_store_dwordx2 {vr(D+4,2)}, v{vBpub}, {WS}, s{sB2} offen sc1')
    stamp(11)
    A('s_barrier')
    A('L_CA_CP:')
    A(f's_cmp_eq_u32 s{sS}, 63\ns_cbranch_scc1 L_CA_DONE')
    stamp('acc')
    A(f's_add_u32 s{sS}, s{sS}, 1\ns_branch L_CA_LOOP')
    A('L_CA_DONE:')
    stamp('dump')
    if P.get('bbranch',True):
        import g8_mlp
        A(f'v_lshrrev_b32 v0, 4, v{vL16}\ns_lshl_b32 s{sT0}, s{c}, 2\ns_add_u32 s{sT0}, s{sT0}, {L_FL}\nv_mov_b32 v3, s{sT0}\ns_lshr_b32 s88, s{c}, 2')
        A(f's_mul_i32 s{sT0}, s88, 8192\ns_add_u32 s{sT0}, s{sT0}, 122880\ns_lshl_b32 s{sT1}, s{sW}, 11\ns_add_u32 s{sT1}, s{sT1}, s{sT0}\nv_add_u32 v14, s{sT1}, v{vL16}\nv_add_u32 v15, s{sT0}, v{vL16}')
        g8_mlp.phase_b2(A,76,77,88,(50,52))
        g8_mlp.phase_b3(A,54)
    A('s_waitcnt vmcnt(0) lgkmcnt(0)\ns_endpgm')

def gen_cb(A,P,retry,stamp):
    vL16=1; vR2w=2; vSTP=4; vApub=5; vCpub=6; vBpol=7; vT0=8; vT1=9; vT2=10; vT3=11; vR1r=12; vVF=13; vFGA=14; vFGV=15; vVMa=16; vKC=18
    vSEL=20; vONE=24; vHALF=28; vKX=32; vQK=64; vS=80; vP=92; vO=100; vSUM=116; vVWX=120; vVWM=136; vB=152; vSEH=160
    sCX=78; sAX=79; sBR=80; sA=82; sApub=83; sB=84; sCpub=85; sCEXP=86; sKV=88; sVWs=89; sU0=72; sU1=73; sU2=74; sKM=98; sAo=99; sFK=100; sCo=101; sK1=76; sK2=77; sB4=3
    w=sW
    A('L_CB:')
    A('s_setprio 3')
    n,g=vT0,vT1
    A(f'v_and_b32 v{n}, 7, v0\nv_lshrrev_b32 v{g}, 4, v0\nv_lshlrev_b32 v{vT2}, 4, v{n}\nv_and_b32 v{vT3}, 1, v{g}\nv_lshlrev_b32 v{vT3}, 3, v{vT3}\nv_add_u32 v{vT2}, v{vT2}, v{vT3}')
    A(f'v_lshrrev_b32 v{vT3}, 1, v{g}\nv_lshlrev_b32 v{vR2w}, 7, v{vT3}\nv_add_u32 v{vR2w}, v{vR2w}, v{vT2}\ns_lshl_b32 s{sT0}, s{w}, 8\ns_add_u32 s{sT0}, s{sT0}, {L_R2}\nv_add_u32 v{vR2w}, s{sT0}, v{vR2w}')
    A(f'v_lshrrev_b32 v{vT3}, 1, v{g}\nv_lshl_add_u32 v{vApub}, v{vT3}, 8, v{vT2}')
    A(f'v_and_b32 v{vCpub}, 3, v0\nv_lshlrev_b32 v{vCpub}, 5, v{vCpub}\nv_bfe_u32 v{vT3}, v0, 4, 1\nv_lshl_add_u32 v{vCpub}, v{vT3}, 4, v{vCpub}\nv_bfe_u32 v{vT3}, v0, 2, 1\nv_lshl_add_u32 v{vCpub}, v{vT3}, 7, v{vCpub}\nv_bfe_u32 v{vT3}, v0, 3, 1\nv_lshl_add_u32 v{vCpub}, v{vT3}, 3, v{vCpub}')
    A(f's_lshl_b32 s{sT0}, s{w}, 12\ns_add_u32 s{sT0}, s{sT0}, {L_R1}\nv_add_u32 v{vR1r}, s{sT0}, v{vL16}')
    A(f'v_lshlrev_b32 v{vBpol}, 10, v{g}\nv_and_b32 v{vT3}, 0xf0, v{vL16}\nv_add_u32 v{vBpol}, v{vBpol}, v{vT3}\ns_lshl_b32 s{sT0}, s{w}, 8\nv_add_u32 v{vBpol}, s{sT0}, v{vBpol}')
    A(f's_lshr_b32 s{sT0}, s{sRL}, 2\ns_mul_i32 s{sAo}, s{sT0}, 6144\ns_and_b32 s{sT1}, s{sRL}, 3\ns_lshl_b32 s{sT1}, s{sT1}, 10\ns_add_u32 s{sAo}, s{sAo}, s{sT1}\ns_and_b32 s{sT1}, s{w}, 1\ns_lshl_b32 s{sT1}, s{sT1}, 9\ns_add_u32 s{sAo}, s{sAo}, s{sT1}\ns_lshr_b32 s{sT1}, s{w}, 1\ns_lshl_b32 s{sT1}, s{sT1}, 7\ns_add_u32 s{sAo}, s{sAo}, s{sT1}')
    A(f's_lshl_b32 s{sT1}, s{sT0}, 11\ns_add_u32 s{sKM}, s{sAo}, s{sT1}\ns_lshl_b32 s{sT1}, s{sXC}, 15\ns_add_u32 s{sKM}, s{sKM}, s{sT1}\ns_add_u32 s{sKM}, s{sKM}, {KMG}')
    A(f's_lshl_b32 s{sFK}, s{sXC}, 8\ns_lshl_b32 s{sT0}, s{sRL}, 4\ns_add_u32 s{sFK}, s{sFK}, s{sT0}\ns_and_b32 s{sT0}, s{w}, 1\ns_lshl_b32 s{sT0}, s{sT0}, 2\ns_add_u32 s{sFK}, s{sFK}, s{sT0}\ns_add_u32 s{sFK}, s{sFK}, {FLG+FKo}')
    A(f's_lshl_b32 s{sCo}, s{sRL}, 10\ns_lshl_b32 s{sT0}, s{w}, 8\ns_add_u32 s{sCo}, s{sCo}, s{sT0}')
    for i in range(4): A(f'v_mov_b32 v{vSEL+i}, 0\nv_mov_b32 v{vSEH+i}, 0\nv_mov_b32 v{vONE+i}, 0x3f803f80\nv_mov_b32 v{vHALF+i}, 0x3f003f00')
    A(f'v_and_b32 v{vT0}, 15, v0')
    for i in range(16):
        dq=(vSEL if i<8 else vSEH)+(i&7)//2
        A(f'v_cmp_eq_u32 vcc, {i}, v{vT0}\nv_mov_b32 v{vT1}, {0x3f80<<(16*(i&1))}\ns_nop 1\nv_cndmask_b32 v{dq}, v{dq}, v{vT1}, vcc')
    for q in range(4): A(f'v_mov_b32 v{vVWM+4*q+2}, 0\nv_mov_b32 v{vVWM+4*q+3}, 0')
    A(f's_lshl_b32 s{sT0}, s{w}, 11\ns_add_u32 s{sT0}, s{sT0}, {L_VWM}\nv_add_u32 v{vVMa}, s{sT0}, v{vL16}')
    A(f's_lshl_b32 s{sT0}, s{sXC}, 8\ns_lshl_b32 s{sT1}, s{sRL}, 4\ns_add_u32 s{sT0}, s{sT0}, s{sT1}\ns_lshl_b32 s{sT1}, s{w}, 2\ns_add_u32 s{sT0}, s{sT0}, s{sT1}\ns_add_u32 s{sT0}, s{sT0}, {FLG+FVo}\nv_mov_b32 v{vFGA}, s{sT0}')
    A(f's_mul_i32 s{sT0}, s{sXC}, 384\ns_lshl_b32 s{sT1}, s{w}, 5\ns_add_u32 s{sT0}, s{sT0}, s{sT1}\ns_add_u32 s{sT0}, s{sT0}, {FLG+F1o+128}\ns_mov_b64 exec, 0xff\nv_lshlrev_b32 v{vT0}, 2, v0\nv_add_u32 v{vFGA}, s{sT0}, v{vT0}\ns_mov_b64 exec, -1')
    A(f's_lshl_b32 s{sCX}, s{sXC}, 16\ns_add_u32 s{sCX}, s{sCX}, {CBUF}\ns_add_u32 s{sCX}, s{sCX}, s{sCo}\ns_mul_i32 s{sAX}, s{sXC}, 98304\ns_add_u32 s{sAX}, s{sAX}, {ABUF}')
    A(f's_lshl_b32 s{sT2}, s{sRL}, 16\ns_add_u32 s{sT2}, s{sT2}, s{sBB}')
    for pg in range(2):
        bi_calc(A,sBR+pg,sXC,pg); A(f's_add_u32 s{sBR+pg}, s{sBR+pg}, s{sT2}')
    A(f's_mov_b32 s{sCEXP}, 0x3e0293ee\ns_mov_b32 s{sCEXP+1}, 0x3e0293ee')
    A(f's_lshl_b32 s{sKV}, s{sXC}, 2\ns_add_u32 s{sKV}, s{sKV}, s{w}\ns_lshl_b32 s{sKV}, s{sKV}, 13\ns_add_u32 s{sKV}, s{sKV}, {KXG}')
    A(f's_lshl_b32 s{sVWs}, s{sXC}, 4\ns_add_u32 s{sVWs}, s{sVWs}, s{sRL}\ns_lshl_b32 s{sVWs}, s{sVWs}, 2\ns_add_u32 s{sVWs}, s{sVWs}, s{w}\ns_lshl_b32 s{sVWs}, s{sVWs}, 12\ns_add_u32 s{sVWs}, s{sVWs}, {VWG}')
    A(f's_lshl_b32 s{sT0}, s{w}, 3\ns_add_u32 s{sT0}, s{sT0}, {L_FL+F_VWM}\nv_mov_b32 v{vVF}, s{sT0}')
    A(f's_mov_b32 s{sS}, -1\ns_waitcnt lgkmcnt(0)')
    A('s_branch L_W2')
    def check(b,bad):
        A(f'v_max3_u32 v{vT2}, v{b}, v{b+1}, v{b+2}\nv_max_u32 v{vT2}, v{vT2}, v{b+3}\nv_cmp_eq_u32 vcc, -1, v{vT2}\ns_cbranch_vccnz {bad}')
    T0,T1,T2=vS,vS+4,vS+8
    A('L_CB_LOOP:')
    for i in range(4): A(f'v_mov_b32 v{T0+i}, 0')
    A(f's_mov_b64 exec, {sr(sLO,2)}')
    for i in range(4): A(f'v_mov_b32 v{T0+i}, 0xf149f2ca')
    A('s_mov_b64 exec, -1')
    A(f's_and_b32 s{sT0}, s{sS1}, 15\ns_lshl_b32 s{sT0}, s{sT0}, 18\ns_add_u32 s{sK1}, s{sT0}, s{sKV}\ns_add_u32 s{sK2}, s{sK1}, 4096\ns_add_u32 s{sU1}, s{sS}, 2')
    A(f's_cmp_lt_i32 s{sS}, 1\ns_cbranch_scc1 L_W1f')
    delay(A,P['DP'])
    for i in range(4): A(f'v_mov_b32 v{vT0+i}, -1')
    A(f'buffer_store_dwordx4 {vr(vT0,4)}, v{vBpol}, {WS}, s{sB} offen sc1\nbuffer_store_dwordx4 {vr(vT0,4)}, v{vBpol}, {WS}, s{sB4} offen sc1')
    A(f's_add_u32 s{sT0}, s{sS}, 3\ns_and_b32 s{sT0}, s{sT0}, 3\ns_lshl_b32 s{sT1}, s{sT0}, 14\ns_add_u32 s{sT1}, s{sT1}, s{sCX}')
    A(f's_add_u32 s{sT0}, s{sS}, 2\ns_and_b32 s{sT0}, s{sT0}, 3\ns_mul_i32 s{sT0}, s{sT0}, 24576\ns_add_u32 s{sT0}, s{sT0}, s{sAX}\ns_add_u32 s{sT0}, s{sT0}, s{sAo}')
    A(f's_mov_b64 exec, {sr(sM8,2)}')
    lstore(A,[f'buffer_store_dwordx2 {vr(vT0,2)}, v{vApub}, {WS}, s{sT0} offen', f's_mov_b64 exec, {sr(sLO,2)}', f'buffer_store_dwordx2 {vr(vT0,2)}, v{vCpub}, {WS}, s{sT1} offen'])
    A('s_mov_b64 exec, -1')
    A('L_W1f:')
    A(f'buffer_load_dword v{vFGV}, v{vFGA}, {WS}, 0 offen sc1')
    A(f's_and_b32 s{sT0}, s{sS}, 3\ns_cmp_ge_u32 s{sT0}, 2\ns_cselect_b32 s{sB}, s{sBR+1}, s{sBR}\ns_lshl_b32 s{sT0}, s{sT0}, 20\ns_add_u32 s{sB}, s{sB}, s{sT0}\ns_add_u32 s{sB4}, s{sB}, 4096')
    A(f's_and_b32 s{sT1}, s{sS1}, 3\ns_lshl_b32 s{sT1}, s{sT1}, 14\ns_add_u32 s{sCpub}, s{sCX}, s{sT1}')
    stamp(8)
    A('s_barrier')
    stamp(0)
    for rd in range(4): A(f'ds_read_b128 {vr(vQK+4*rd,4)}, v{vR1r} offset:{1024*rd}')
    for rd in range(4):
        A(f's_waitcnt lgkmcnt({0 if P["stamps"] else 3-rd})\n{MF} {vr(vO,4)}, {vr(vQK+4*rd,4)}, {vr(vSEL,4)}, {"0" if rd==0 else vr(vO,4)}')
    A(f's_mov_b64 exec, {sr(sM8,2)}')
    A.nop(7)
    A(f'v_cvt_pk_bf16_f32 v{vKC}, v{vO}, v{vO+1}\nv_cvt_pk_bf16_f32 v{vKC+1}, v{vO+2}, v{vO+3}\nv_min_u32 v{vKC}, -2, v{vKC}\nv_min_u32 v{vKC+1}, -2, v{vKC+1}')
    lstore(A,[f'buffer_store_dwordx2 {vr(vKC,2)}, v{vApub}, {WS}, s{sApub} offen'])
    A('s_mov_b64 exec, -1')
    stamp(1)
    A(f's_cmp_lg_u32 s{sS}, 0\ns_cbranch_scc1 L_CF1')
    A('L_CF0:')
    A(f'buffer_load_dword v{vFGV}, v{vFGA}, {WS}, 0 offen sc1\ns_waitcnt vmcnt(0)\nv_cmp_eq_u32 vcc, 0, v{vFGV}\ns_cbranch_vccz L_CF0K')
    if P.get('nobulk'): A('s_branch L_CF0K')
    A('s_sleep 1')
    spin(A,'L_CF0')
    A('L_CF0K:')
    A(f's_add_u32 s{sT1}, s{sKV}, 4096')
    for k in range(8): A(f'buffer_load_dwordx4 {vr(vKX+4*k,4)}, v{vL16}, {WS}, s{sKV if k<4 else sT1} offen offset:{1024*(k&3)} sc1')
    for k in range(4): A(f'buffer_load_dwordx4 {vr(vVWX+4*k,4)}, v{vL16}, {WS}, s{sVWs} offen offset:{1024*k} sc1')
    A('L_CF1:')
    delay(A,P['DA'])
    aload=lambda f: A(f'buffer_load_dwordx4 {vr(vQK+4*f,4)}, v{vL16}, {WS}, s{sA} offen offset:{1024*f} sc1')
    stamp(2)
    for f in range(4): aload(f)
    for f in range(4):
        A(f'L_AW{f}:\ns_waitcnt vmcnt({3-f})')
        check(vQK+4*f,f'L_AR{f}')
        if f==0: stamp(3)
        retry.append((f'L_AR{f}',[(lambda ff=ff: aload(ff)) for ff in range(f,4)],f'L_AW{f}',1<<10))
        fr=vr(vQK+4*f,4)
        A(f'{MF} {vr(T1,4)}, {vr(vKX+4*f,4)}, {fr}, {"0" if f==0 else vr(T1,4)}')
        A(f'{MF} {vr(T2,4)}, {vr(vKX+16+4*f,4)}, {fr}, {"0" if f==0 else vr(T2,4)}')
        A(f'{MF} {vr(T0,4)}, {fr}, {fr}, {vr(T0,4)}')
    stamp(4)
    A(f's_cmp_eq_u32 s{sS}, 63\ns_cbranch_scc1 L_W1')
    mx=vT0; t1=vT1
    kx=lambda k: A(f'buffer_load_dwordx4 {vr(vKX+4*k,4)}, v{vL16}, {WS}, s{sK1 if k<4 else sK2} offen offset:{1024*(k&3)} sc1')
    A('L_FGC:')
    if not P.get('nobulk'): A(f'v_cmp_gt_u32 vcc, s{sU1}, v{vFGV}\ns_cbranch_vccnz L_FGR')
    else: A.nop(2)
    kx(0)
    A(f'v_max3_f32 v{mx}, v{vS+4}, v{vS+5}, v{vS+6}\nv_max3_f32 v{t1}, v{vS+7}, v{vS+8}, v{vS+9}\nv_max3_f32 v{mx}, v{mx}, v{vS+10}, v{vS+11}\nv_max3_f32 v{t1}, v{t1}, v{vS}, v{vS+1}\nv_max3_f32 v{mx}, v{mx}, v{vS+2}, v{vS+3}\nv_max_f32 v{mx}, v{mx}, v{t1}')
    A(f'v_mov_b32 v{t1}, v{mx}\ns_nop 0'); kx(1); A(f'v_permlane32_swap_b32 v{mx}, v{t1}\ns_nop 0\nv_max_f32 v{mx}, v{mx}, v{t1}')
    A(f'v_mov_b32 v{t1}, v{mx}\ns_nop 1\nv_permlane16_swap_b32 v{mx}, v{t1}\ns_nop 0\nv_max_f32 v{mx}, v{mx}, v{t1}')
    A(f'v_mul_f32 v{mx}, s{sCEXP}, v{mx}\nv_mul_f32 v{t1}, 1.0, v{mx}')
    kx(2)
    for i in (4,6,8,10,0,2): A(f'v_pk_fma_f32 {vr(vS+i,2)}, {vr(vS+i,2)}, {sr(sCEXP,2)}, {vr(mx,2)} neg_lo:[0,0,1] neg_hi:[0,0,1]')
    for i in (4,5,6,7): A(f'v_exp_f32 v{vS+i}, v{vS+i}')
    kx(3)
    for i in (8,9,10,11): A(f'v_exp_f32 v{vS+i}, v{vS+i}')
    A('L_VMP:')
    A(f'ds_read_b64 {vr(vB,2)}, v{vVF}')
    for q in range(4): A(f'ds_read_b64 {vr(vVWM+4*q,2)}, v{vVMa} offset:{1024*(q>>1)+8*(q&1)}')
    A(f's_cmp_eq_u32 s{sU0}, 1\ns_cbranch_scc1 L_VMC')
    for i in (0,1,2,3): A(f'v_exp_f32 v{vS+i}, v{vS+i}')
    kx(4)
    A(f'v_cvt_pk_bf16_f32 v{vP}, v{T1}, v{T1+1}\nv_cvt_pk_bf16_f32 v{vP+1}, v{T1+2}, v{T1+3}\nv_cvt_pk_bf16_f32 v{vP+2}, v{T2}, v{T2+1}\nv_cvt_pk_bf16_f32 v{vP+3}, v{T2+2}, v{T2+3}')
    A(f'v_cvt_pk_bf16_f32 v{vP+4}, v{T0}, v{T0+1}\nv_cvt_pk_bf16_f32 v{vP+5}, v{T0+2}, v{T0+3}\nv_cvt_pk_bf16_f32 v{vP+6}, v{T0}, v{T0+1}\nv_cvt_pk_bf16_f32 v{vP+7}, v{T0+2}, v{T0+3}')
    kx(5)
    A(f'{MF} {vr(vSUM,4)}, {vr(vONE,4)}, {vr(vP,4)}, 0')
    A(f'{MF} {vr(vO,4)}, {vr(vVWX,4)}, {vr(vP,4)}, 0')
    A(f'v_permlane32_swap_b32 v{vP+6}, v{vP+4}\nv_permlane32_swap_b32 v{vP+7}, v{vP+5}')
    for ct in range(1,4): A(f'{MF} {vr(vO+4*ct,4)}, {vr(vVWX+4*ct,4)}, {vr(vP,4)}, 0')
    A(f'{MF} {vr(vSUM,4)}, {vr(vHALF,4)}, {vr(vP+4,4)}, {vr(vSUM,4)}')
    kx(6)
    stamp(5)
    A('L_VMC:')
    A(f's_waitcnt lgkmcnt(0)\nv_min_u32 v{vT2}, v{vB}, v{vB+1}\nv_cmp_gt_u32 vcc, s{sS1}, v{vT2}\ns_cbranch_vccz L_VMK')
    A(f's_mov_b32 s{sU0}, 1')
    spin(A,'L_VMP')
    A('L_VMK:')
    stamp(6)
    for ct in range(4): A(f'{MF} {vr(vO+4*ct,4)}, {vr(vVWM+4*ct,4)}, {vr(vP+4,4)}, {vr(vO+4*ct,4)}')
    A(f'v_rcp_f32 v{vT0}, v{vSUM}\nv_rcp_f32 v{vT1}, v{vSUM}')
    kx(7)
    A.nop(2)
    A(f's_mov_b64 exec, {sr(sM8,2)}')
    for ct in range(4):
        o=vO+4*ct
        A(f'v_pk_mul_f32 {vr(o,2)}, {vr(o,2)}, {vr(vT0,2)}\nv_pk_mul_f32 {vr(o+2,2)}, {vr(o+2,2)}, {vr(vT0,2)}\nv_cvt_pk_bf16_f32 v{o}, v{o}, v{o+1}\nv_cvt_pk_bf16_f32 v{o+1}, v{o+2}, v{o+3}')
        A(f'ds_write_b64 v{vR2w}, {vr(o,2)} offset:{1024*ct}')
    A('s_mov_b64 exec, -1\ns_waitcnt lgkmcnt(0)\ns_barrier')
    stamp(7)
    A(f's_and_b32 s{sT0}, s{sS1}, {VWRING-1}\ns_lshl_b32 s{sT0}, s{sT0}, 21\ns_add_u32 s{sK1}, s{sT0}, s{sVWs}')
    A('s_barrier')
    stamp(9)
    A('L_W1:')
    def fkflag():
        l=A.newlabel('FK')
        A(f's_cmp_lt_u32 s{w}, 2\ns_cbranch_scc1 {l}')
        A(f's_mov_b64 exec, 1\nv_mov_b32 v{vT0}, 0')
        lstore(A,[f'buffer_store_dword v{vSTP}, v{vT0}, {WS}, s{sFK} offen'])
        A(f's_mov_b64 exec, -1\n{l}:')
    A(f's_cmp_lt_u32 s{w}, 2\ns_cbranch_scc1 L_W1a')
    A(f's_mov_b64 exec, {sr(sM8,2)}')
    lstore(A,[f'buffer_store_dwordx2 {vr(vKC,2)}, v{vApub}, {WS}, s{sU2} offen'])
    A('s_mov_b64 exec, -1')
    A('L_W1a:')
    A(f's_cmp_lg_u32 s{sS}, 63\ns_cbranch_scc1 L_W1b')
    A('s_waitcnt vmcnt(0)')
    fkflag()
    A('s_branch L_CB_DONE')
    A('L_W1b:')
    delay(A,P['DB'])
    stamp(10)
    b=vB
    bl=lambda: A(f'buffer_load_dwordx4 {vr(vB,4)}, v{vBpol}, {WS}, s{sB} offen sc1\nbuffer_load_dwordx4 {vr(vB+4,4)}, v{vBpol}, {WS}, s{sB4} offen sc1')
    def bchk(n):
        A(f's_waitcnt vmcnt({n+1})\n{MF} {vr(vO,4)}, {vr(vSEL,4)}, {vr(vB,4)}, 0')
        A(f'v_max3_u32 v{vT2}, v{b}, v{b+1}, v{b+2}\ns_waitcnt vmcnt({n})\n{MF} {vr(vO,4)}, {vr(vSEL,4)}, {vr(vB+4,4)}, {vr(vO,4)}')
        A(f'v_max3_u32 v{vT3}, v{b+3}, v{b+4}, v{b+5}\nv_max3_u32 v{vT2}, v{vT2}, v{b+6}, v{b+7}\nv_max_u32 v{vT2}, v{vT2}, v{vT3}\nv_cmp_eq_u32 vcc, -1, v{vT2}\ns_cbranch_vccz L_BOK')
    bl()
    delay(A,64)
    for k in range(4): A(f'buffer_load_dwordx4 {vr(vVWX+4*k,4)}, v{vL16}, {WS}, s{sK1} offen offset:{1024*k} sc1')
    bchk(4)
    A('L_BP:')
    A(f's_add_u32 s{sSPG}, s{sSPG}, 1')
    bl()
    bchk(0)
    spin(A,'L_BP')
    A('L_BOK:')
    stamp(11)
    A(f's_mov_b64 exec, {sr(sLO,2)}')
    A.nop(2)
    A(f'v_cvt_pk_bf16_f32 v{vO}, v{vO}, v{vO+1}\nv_cvt_pk_bf16_f32 v{vO+1}, v{vO+2}, v{vO+3}\nv_min_u32 v{vO}, -2, v{vO}\nv_min_u32 v{vO+1}, -2, v{vO+1}')
    lstore(A,[f'buffer_store_dwordx2 {vr(vO,2)}, v{vCpub}, {WS}, s{sCpub} offen'])
    A('s_mov_b64 exec, -1')
    stamp(12)
    A('s_barrier')
    fkflag()
    A('s_branch L_W2b')
    A('L_W2:')
    A('s_barrier')
    A('L_W2b:')
    P['rt'](10,sS,(vT0,vT1))
    A(f's_add_u32 s{sS}, s{sS}, 1\ns_add_u32 s{sS1}, s{sS}, 1\nv_mov_b32 v{vSTP}, s{sS1}\ns_mov_b32 s{sU0}, 0')
    A(f's_and_b32 s{sT0}, s{sS}, 3\ns_mul_i32 s{sT1}, s{sT0}, 24576\ns_add_u32 s{sT1}, s{sT1}, s{sAX}\ns_add_u32 s{sApub}, s{sT1}, s{sAo}\ns_mul_i32 s{sT2}, s{w}, 6144\ns_add_u32 s{sA}, s{sT1}, s{sT2}')
    A(f's_and_b32 s{sU2}, s{sS}, 15\ns_lshl_b32 s{sU2}, s{sU2}, 18\ns_add_u32 s{sU2}, s{sU2}, s{sKM}')
    stamp('acc')
    A('s_branch L_CB_LOOP')
    A('L_FGR:')
    A(f's_add_u32 s{sSPG}, s{sSPG}, {1<<24}\nbuffer_load_dword v{vFGV}, v{vFGA}, {WS}, 0 offen sc1\ns_waitcnt vmcnt(0)')
    spin(A,'L_FGC')
    A('L_CB_DONE:')
    stamp('dump')
    A('s_waitcnt vmcnt(0) lgkmcnt(0)\ns_endpgm')
```

```python
from g7_common import *
from g6_bk import wave_sum
vWF=40; vWG=136
def F(i): return vr(vWF+i*4,4)
def G(t,ct): return vr(vWG+(t*2+ct)*4,4)
L_CNT=L_ROLE+32
def prologue(A,rt):
    A.lines += [f'; @launch grid=(256,1,1) block=(768,1,1) lds={LDS_BYTES}',
      '.amdgcn_target "amdgcn-amd-amdhsa--gfx950"','.text',f'.globl {KNAME}','.p2align 8',f'.type {KNAME},@function',f'{KNAME}:']
    A('s_cmp_ge_u32 s2, 256\ns_cbranch_scc1 L_END')
    A('s_load_dwordx16 s[32:47], s[0:1], 0\ns_load_dwordx16 s[48:63], s[0:1], 64')
    A(f'v_lshrrev_b32 v2, 6, v0\nv_and_b32 v0, 63, v0\nv_readfirstlane_b32 s{sWAVE}, v2\nv_lshlrev_b32 v1, 4, v0')
    A(f's_and_b32 s{sW}, s{sWAVE}, 3\ns_getreg_b32 s{sXC}, hwreg(HW_REG_XCC_ID)\ns_and_b32 s{sXC}, s{sXC}, 15')
    A('s_waitcnt lgkmcnt(0)')
    srd(A,sDBG,60,256)
    A(f's_cmp_lt_u32 s{sWAVE}, 2\ns_cbranch_scc1 L_NCP\ns_cmp_ge_u32 s{sWAVE}, 9\ns_cbranch_scc1 L_NCP')
    A('s_getpc_b64 s[72:73]')
    A(f's_sub_u32 s74, s{sWAVE}, 2\ns_lshl_b32 s74, s74, 12\nv_lshlrev_b32 v15, 6, v0\nv_add_u32 v15, s74, v15\nv_min_u32 v15, CODE_BYTES, v15')
    A('global_load_dword v16, v15, s[72:73]')
    A('L_NCP:')
    A(f's_cmp_lg_u32 s{sWAVE}, 0\ns_cbranch_scc1 L_C00')
    A(f's_lshl_b32 s{sT0}, s{sXC}, 4\ns_mov_b64 exec, 1\nv_mov_b32 v14, 1\nv_mov_b32 v9, s{sT0}')
    A(f'buffer_atomic_add v14, v9, {sr(sDBG,4)}, 0 offen sc0\ns_mov_b64 exec, -1')
    A('L_C00:')
    srd(A,sWS,62,0x10000000); srd(A,sX,32,4194304); srd(A,sOUT,58,4194304)
    A(f's_mov_b32 s{sM8}, 0x00ff00ff\ns_mov_b32 s{sM8+1}, 0x00ff00ff\ns_mov_b32 s{sLO}, -1\ns_mov_b32 s{sLO+1}, 0\ns_mov_b32 s{sHI}, 0\ns_mov_b32 s{sHI+1}, -1\ns_mov_b32 s{sCM}, 0x00ff00ff\ns_mov_b32 s{sCM+1}, 0')
    A(f's_add_u32 s{sBB}, s62, {BBMIN+0x1fffff}\ns_and_b32 s{sBB}, s{sBB}, 0xffe00000\ns_sub_u32 s{sBB}, s{sBB}, s62')
    A(f's_mov_b32 s{sSPIN}, 0\ns_mov_b32 s{sSPG}, 0\ns_mov_b32 s{sMODE}, 0')
    rt(0)
    A('v_mov_b32 v4, -1\nv_mov_b32 v5, -1\nv_mov_b32 v6, -1\nv_mov_b32 v7, -1')
    A(f's_cmp_ge_u32 s{sWAVE}, 8\ns_cbranch_scc1 L_PB')
    A(f's_lshl_b32 s{sT0}, s2, 14\ns_add_u32 s{sT0}, s{sT0}, s{sBB}\ns_lshl_b32 s{sT1}, s{sWAVE}, 10\ns_add_u32 s{sT0}, s{sT0}, s{sT1}\ns_add_u32 s{sT1}, s{sT0}, 8192')
    A(f'buffer_store_dwordx4 v[4:7], v1, {WS}, s{sT0} offen sc1\nbuffer_store_dwordx4 v[4:7], v1, {WS}, s{sT1} offen sc1\ns_branch L_PD')
    A('L_PB:')
    A(f's_mul_i32 s{sT0}, s2, 5120\ns_lshl_b32 s{sT1}, s{sW}, 10\ns_add_u32 s{sT1}, s{sT1}, s{sT0}')
    A(f'buffer_store_dwordx4 v[4:7], v1, {WS}, s{sT1} offen sc1')
    A(f's_cmp_lg_u32 s{sW}, 0\ns_cbranch_scc1 L_PC\ns_add_u32 s{sT1}, s{sT0}, 4096')
    A(f'buffer_store_dwordx4 v[4:7], v1, {WS}, s{sT1} offen sc1')
    A(f'v_mov_b32 v8, 0\nv_mov_b32 v9, {L_CNT}\nds_write_b32 v9, v8')
    A('L_PC:')
    A(f's_cmp_lg_u32 s{sW}, 1\ns_cbranch_scc1 L_PC2')
    A(f's_lshr_b32 s{sT1}, s2, 2\ns_cmp_eq_u32 s{sT1}, {FGo//1024}\ns_cbranch_scc1 L_PD')
    A(f'v_mov_b32 v8, 0\nv_lshlrev_b32 v9, 2, v0\ns_lshl_b32 s{sT1}, s2, 8\ns_add_u32 s{sT1}, s{sT1}, {FLG}')
    A(f'buffer_store_dword v8, v9, {WS}, s{sT1} offen sc1\ns_branch L_PD')
    A('L_PC2:')
    A(f's_cmp_lg_u32 s{sW}, 2\ns_cbranch_scc1 L_PD')
    A(f's_lshl_b32 s{sT1}, s2, 2\ns_add_u32 s{sT1}, s{sT1}, {FLG+FGo}\ns_mov_b64 exec, 1\nv_mov_b32 v8, 0\nbuffer_store_dword v8, v8, {WS}, s{sT1} offen sc1\ns_mov_b64 exec, -1')
    A('L_PD:')
    A(f's_cmp_lg_u32 s{sWAVE}, 0\ns_cbranch_scc1 L_C0')
    A(f's_waitcnt vmcnt(0)\nv_readfirstlane_b32 s{sR}, v14')
    A(f'v_mov_b32 v8, s{sXC}\nv_mov_b32 v9, s{sR}\nv_mov_b32 v12, {L_ROLE}\nds_write_b64 v12, v[8:9]')
    A('L_C0:')
    A(f's_cmp_lg_u32 s{sWAVE}, 1\ns_cbranch_scc1 L_C1')
    A('s_waitcnt vmcnt(0)\ns_mov_b64 exec, 1\nv_mov_b32 v9, 0')
    A('s_mov_b32 s72, 0x7fffffff\ns_mov_b32 s73, 0x7fffffff')
    for rep in range(2):
        for h,(so,acc) in enumerate(((sT0,72),(sT1,73))):
            A(f's_memtime s[74:75]\ns_waitcnt lgkmcnt(0)\nbuffer_load_dword v8, v9, {WS}, s{so} offen offset:{256*rep} sc1\ns_waitcnt vmcnt(0)\ns_memtime s[76:77]\ns_waitcnt lgkmcnt(0)\ns_sub_u32 s76, s76, s74\ns_min_u32 s{acc}, s{acc}, s76')
    A(f'v_mov_b32 v10, -1')
    for rep in range(2):
        for so in (sT0,sT1): A(f'buffer_store_dword v10, v9, {WS}, s{so} offen offset:{256*rep} sc1')
    A(f's_cmp_lt_u32 s73, s72\ns_cselect_b32 s72, 1, 0\ns_lshr_b32 s73, s2, 7\ns_lshl_b32 s73, s73, 1\ns_add_u32 s72, s72, s73\ns_mul_i32 s72, s72, 5\ns_add_u32 s72, s72, 10\ns_lshl_b32 s72, 1, s72\ns_add_u32 s72, s72, 1')
    A(f'v_mov_b32 v8, s72\nv_mov_b32 v12, {L_ROLE+8}\nds_write_b32 v12, v8\ns_mov_b64 exec, -1')
    A('L_C1:')
    A('s_waitcnt vmcnt(0) lgkmcnt(0)\ns_barrier')
    A(f'v_mov_b32 v12, {L_ROLE}\nds_read_b128 v[8:11], v12\ns_waitcnt lgkmcnt(0)')
    A(f'v_readfirstlane_b32 s{sR}, v9')
    A(f's_cmp_lg_u32 s{sWAVE}, 8\ns_cbranch_scc1 L_C2')
    A(f's_lshl_b32 s{sT0}, s{sXC}, 4\ns_add_u32 s{sT0}, s{sT0}, 4\ns_mov_b64 exec, 1\nv_mov_b32 v9, s{sT0}\nbuffer_atomic_add v10, v9, {sr(sDBG,4)}, 0 offen\ns_mov_b64 exec, -1')
    A('L_C2:')
    A(f's_and_b32 s{sXC}, s{sXC}, 7\ns_and_b32 s{sR}, s{sR}, 31')
def weights(A,fl=''):
    A('L_WGT:')
    A(f's_and_b32 s{sRL}, s{sR}, 15')
    A(f's_cmp_ge_u32 s{sWAVE}, 8\ns_cbranch_scc1 L_WG8')
    A(f's_lshl_b32 s{sT3}, s{sXC}, 10\ns_lshl_b32 s{sT1}, s{sRL}, 6\ns_add_u32 s{sT3}, s{sT3}, s{sT1}\ns_lshl_b32 s{sT1}, s{sWAVE}, 20\ns_add_u32 s{sT3}, s{sT3}, s{sT1}')
    A('v_lshrrev_b32 v8, 2, v0\nv_and_b32 v9, 3, v0\nv_lshlrev_b32 v9, 4, v9\nv_lshlrev_b32 v11, 13, v8\nv_add_u32 v11, v11, v9')
    A(f's_lshl_b32 s{sT2}, s{sWAVE}, 13')
    def dma(ptr,lb):
        srd(A,sT,ptr,8388608)
        for i in range(8):
            A(f's_add_u32 s{sT1}, s{sT3}, {i*16*8192}\ns_add_u32 m0, s{sT2}, {lb+i*1024}\ns_nop 0\nbuffer_load_dwordx4 v11, {sr(sT,4)}, s{sT1} offen {fl} lds')
    A('s_sleep 3')
    dma(38,0); dma(40,65536)
    A(f's_cmp_ge_u32 s{sR}, 16\ns_cbranch_scc1 L_WGB')
    A('v_lshrrev_b32 v9, 4, v0\nv_lshlrev_b32 v9, 2, v9\nv_bfe_u32 v10, v0, 3, 1\nv_lshl_add_u32 v9, v10, 5, v9\nv_bfe_u32 v10, v0, 2, 1\nv_add_u32 v9, v9, v10\nv_lshlrev_b32 v9, 6, v9\nv_and_b32 v10, 3, v0\nv_lshl_add_u32 v9, v10, 3, v9')
    A(f'v_add_u32 v9, s{sT2}, v9\nv_add_u32 v10, 0x10000, v9')
    def tr_sparse(m,va):
        for eh in range(2):
            for q in range(2):
                for H in range(2):
                    for ip in range(2):
                        b=vWF+((m*2+eh)*2+q)*8+4*H+2*ip; off=(64*q+16*H+2*ip)*64+eh*32
                        A(f'ds_read_b64_tr_b16 {vr(b,2)}, v{va} offset:{off}')
        A('s_waitcnt lgkmcnt(0)')
    def tr_dense(m,va):
        for eh in range(2):
            for u in range(4):
                b=vWF+((m*2+eh)*4+u)*4; off=u*2048+eh*32
                A(f'ds_read_b64_tr_b16 {vr(b,2)}, v{va} offset:{off}\nds_read_b64_tr_b16 {vr(b+2,2)}, v{va} offset:{off+256}')
        A('s_waitcnt lgkmcnt(0)')
    def dma_o():
        srd(A,sT,42,8388608)
        A(f's_lshl_b32 s{sT0}, s{sXC}, 20\ns_lshl_b32 s{sT1}, s{sWAVE}, 17\ns_add_u32 s{sT0}, s{sT0}, s{sT1}\ns_lshl_b32 s{sT1}, s{sRL}, 7\ns_add_u32 s{sT0}, s{sT0}, s{sT1}')
        A('v_lshrrev_b32 v8, 3, v0\nv_and_b32 v12, 7, v0\nv_lshlrev_b32 v12, 4, v12\nv_lshl_add_u32 v12, v8, 11, v12')
        for i in range(8):
            A(f's_add_u32 s{sT1}, s{sT0}, {i*8*2048}\ns_add_u32 m0, s{sT2}, {65536+i*1024}\ns_nop 0\nbuffer_load_dwordx4 v12, {sr(sT,4)}, s{sT1} offen {fl} lds')
    def seq(tr):
        A('s_waitcnt vmcnt(8)'); tr(1,9); dma(36,0)
        A('s_waitcnt vmcnt(8)'); tr(2,10); dma_o()
        A('s_waitcnt vmcnt(8)'); tr(0,9)
    seq(tr_sparse)
    A('s_branch L_WG8')
    A('L_WGB:')
    A('v_lshrrev_b32 v9, 4, v0\nv_lshlrev_b32 v9, 3, v9\nv_bfe_u32 v10, v0, 2, 2\nv_add_u32 v9, v9, v10\nv_lshlrev_b32 v9, 6, v9\nv_and_b32 v10, 3, v0\nv_lshl_add_u32 v9, v10, 3, v9')
    A(f'v_add_u32 v9, s{sT2}, v9\nv_add_u32 v10, 0x10000, v9')
    seq(tr_dense)
    A('L_WG8:')
def weights2(A):
    A('v_lshrrev_b32 v8, 4, v0\nv_lshlrev_b32 v8, 3, v8\nv_bfe_u32 v9, v0, 2, 2\nv_add_u32 v8, v8, v9\nv_lshlrev_b32 v12, 7, v8\nv_and_b32 v9, 3, v0\nv_lshl_add_u32 v12, v9, 3, v12')
    A(f's_cmp_ge_u32 s{sR}, 16\ns_cbranch_scc1 L_G2B\ns_cmp_ge_u32 s{sWAVE}, 8\ns_cbranch_scc1 L_G2E')
    A(f's_lshr_b32 s{sT0}, s{sWAVE}, 1\ns_lshl_b32 s{sT0}, s{sT0}, 14\ns_and_b32 s{sT1}, s{sWAVE}, 1\ns_lshl_b32 s{sT1}, s{sT1}, 6\ns_add_u32 s{sT0}, s{sT0}, s{sT1}\ns_add_u32 s{sT0}, s{sT0}, 65536\nv_add_u32 v10, s{sT0}, v12')
    for t in range(4):
        for ct in range(2):
            b=vWG+(t*2+ct)*4; off=t*4096+ct*32
            A(f'ds_read_b64_tr_b16 {vr(b,2)}, v10 offset:{off}\nds_read_b64_tr_b16 {vr(b+2,2)}, v10 offset:{off+512}')
    A('s_branch L_G2E')
    A('L_G2B:')
    A(f's_cmp_lt_u32 s{sWAVE}, 8\ns_cbranch_scc1 L_G2E')
    A(f's_lshl_b32 s{sT0}, s{sW}, 14\ns_add_u32 s{sT0}, s{sT0}, 65536\nv_add_u32 v10, s{sT0}, v12')
    for t in range(4):
        for ct in range(4):
            b=104+(t*4+ct)*4; off=t*4096+ct*32
            A(f'ds_read_b64_tr_b16 {vr(b,2)}, v10 offset:{off}\nds_read_b64_tr_b16 {vr(b+2,2)}, v10 offset:{off+512}')
        A('s_waitcnt lgkmcnt(0)')
    A('L_G2E:')
    A('s_waitcnt lgkmcnt(0)')
def gate_xf(A,rt):
    A(f's_cmp_lt_u32 s{sWAVE}, 8\ns_cbranch_scc1 L_GX_SKIP\ns_setprio 3')
    A('v_lshrrev_b32 v2, 3, v0\nv_and_b32 v3, 7, v0\nv_lshlrev_b32 v4, 11, v3\nv_lshl_add_u32 v4, v2, 4, v4')
    A(f's_lshl_b32 s{sT0}, s2, 14\ns_lshl_b32 s{sT1}, s{sW}, 9\ns_add_u32 s{sT1}, s{sT1}, s{sT0}')
    for q in range(4): A(f'buffer_load_dwordx4 {vr(56+4*q,4)}, v4, {sr(sX,4)}, s{sT1} offen offset:{128*q}')
    A('v_lshlrev_b32 v5, 8, v2\nv_lshl_add_u32 v5, v3, 4, v5\nv_lshlrev_b32 v2, 5, v0')
    A(f's_lshl_b32 s{sT1}, s{sW}, 12\ns_add_u32 s{sT0}, s{sT0}, s{sT1}')
    for rr in range(2):
        for hh in range(2): A(f'buffer_load_dwordx4 {vr(16+8*rr+4*hh,4)}, v2, {sr(sX,4)}, s{sT0} offen offset:{2048*rr+16*hh}')
    srd(A,sT,56,2048)
    for hh in range(2): A(f'buffer_load_dwordx4 {vr(32+4*hh,4)}, v2, {sr(sT,4)}, 0 offen offset:{16*hh}')
    srd(A,sT,48,2048)
    for hh in range(2): A(f'buffer_load_dwordx4 {vr(40+4*hh,4)}, v2, {sr(sT,4)}, 0 offen offset:{16*hh}')
    A(f's_lshr_b32 s{sT0}, s2, 1\ns_lshl_b32 s{sT0}, s{sT0}, 15\ns_and_b32 s{sT1}, s2, 1\ns_lshl_b32 s{sT1}, s{sT1}, 7\ns_add_u32 s{sT0}, s{sT0}, s{sT1}\ns_lshl_b32 s{sT1}, s{sW}, 13\ns_add_u32 s{sT0}, s{sT0}, s{sT1}\ns_add_u32 s{sT0}, s{sT0}, {XF}\ns_add_u32 s{sT1}, s{sT0}, 4096')
    for i in range(4): A(f'v_mov_b32 v{8+i}, 0')
    A('s_waitcnt vmcnt(8)')
    rt(100,None,(80,81))
    for q in range(4): A(f'buffer_store_dwordx4 {vr(56+4*q,4)}, v5, {WS}, s{sT0 if q<2 else sT1} offen offset:{2048*(q&1)} sc1')
    A('s_waitcnt vmcnt(4)')
    rt(101,None,(80,81))
    for d in range(8):
        for rr in range(2):
            A(f'v_dot2_f32_bf16 v{8+rr}, v{16+8*rr+d}, v{32+d}, v{8+rr}\nv_dot2_f32_bf16 v{10+rr}, v{16+8*rr+d}, v{40+d}, v{10+rr}')
    A.nop(3)
    wave_sum(A,[8,9,10,11],12)
    A('v_cvt_pk_bf16_f32 v12, v8, v9\nv_cvt_pk_bf16_f32 v13, v10, v11\nv_lshlrev_b32 v8, 16, v12\nv_and_b32 v9, 0xffff0000, v12\nv_lshlrev_b32 v10, 16, v13\nv_and_b32 v11, 0xffff0000, v13')
    for r in (8,9):
        A(f'v_mul_f32 v{r}, 0xbfb8aa3b, v{r}\nv_exp_f32 v{r}, v{r}\ns_nop 0\nv_add_f32 v{r}, 1.0, v{r}\nv_rcp_f32 v{r}, v{r}\ns_nop 0')
    A('v_cvt_pk_bf16_f32 v12, v8, v9\nv_lshlrev_b32 v8, 16, v12\nv_and_b32 v9, 0xffff0000, v12')
    A(f's_lshl_b32 s{sT0}, s2, 5\ns_lshl_b32 s{sT1}, s{sW}, 3\ns_add_u32 s{sT0}, s{sT0}, s{sT1}\ns_add_u32 s{sT0}, s{sT0}, {GR}\ns_add_u32 s{sT1}, s{sT0}, 8192')
    rt(102,None,(80,81))
    A(f's_lshl_b32 s{sT2}, s2, 3\ns_lshl_b32 s{sT3}, s{sW}, 1\ns_add_u32 s{sT2}, s{sT2}, s{sT3}\ns_sub_u32 s{sT2}, 0xffff, s{sT2}\ns_sub_u32 s{sT3}, s{sT2}, 1')
    for k,sq in ((0,sT2),(1,sT3)):
        A(f'v_ashrrev_i32 v{14+k}, 31, v{10+k}\nv_or_b32 v{14+k}, 0x80000000, v{14+k}\nv_xor_b32 v{14+k}, v{14+k}, v{10+k}\nv_and_b32 v{14+k}, 0xffff0000, v{14+k}\nv_or_b32 v{14+k}, s{sq}, v{14+k}')
    A(f's_add_u32 s{sT2}, s{sT0}, 16384')
    A(f's_mov_b64 exec, 1\nv_mov_b32 v12, 0\nbuffer_store_dwordx2 v[8:9], v12, {WS}, s{sT0} offen sc1\nbuffer_store_dwordx2 v[10:11], v12, {WS}, s{sT1} offen sc1\nbuffer_store_dwordx2 v[14:15], v12, {WS}, s{sT2} offen sc1')
    A(f's_waitcnt vmcnt(0)\nv_mov_b32 v8, 1\nv_mov_b32 v9, {L_CNT}\nds_add_rtn_u32 v10, v9, v8\ns_waitcnt lgkmcnt(0)\nv_readfirstlane_b32 s{sT0}, v10\ns_cmp_lg_u32 s{sT0}, 3\ns_cbranch_scc1 L_GX1')
    A(f's_lshl_b32 s{sT0}, s2, 2\ns_add_u32 s{sT0}, s{sT0}, {FLG+FGo}\nv_mov_b32 v8, 100\nbuffer_store_dword v8, v12, {WS}, s{sT0} offen sc1')
    A('L_GX1:')
    A('s_mov_b64 exec, -1')
    rt(103,None,(80,81))
    A('s_setprio 0')
    A('L_GX_SKIP:')
def census_poll(A):
    A(f's_cmp_lg_u32 s{sWAVE}, 8\ns_cbranch_scc1 L_CP_SKIP')
    A('v_and_b32 v9, 15, v0\nv_lshlrev_b32 v9, 4, v9')
    A('L_C3:')
    A(f'buffer_load_dword v8, v9, {sr(sDBG,4)}, 0 offen offset:4 sc1\ns_waitcnt vmcnt(0)\nv_and_b32 v10, 0x3ff, v8\nv_mov_b32 v11, v10')
    for sh in (8,4,2,1): A(f's_nop 1\nv_add_u32_dpp v11, v11, v11 row_ror:{sh} row_mask:0xf bank_mask:0xf')
    A(f's_nop 0\nv_readfirstlane_b32 s{sT0}, v11\ns_cmp_ge_u32 s{sT0}, 256\ns_cbranch_scc1 L_C4')
    A(f's_sleep 4\ns_add_u32 s{sSPIN}, s{sSPIN}, 1\ns_cmp_lt_u32 s{sSPIN}, {SPIN}\ns_cbranch_scc1 L_C3')
    A('L_C4:')
    A(f'v_bfe_u32 v12, v8, 10, 5\nv_bfe_u32 v13, v8, 15, 5\nv_cmp_gt_u32 vcc, v13, v12\ns_and_b32 s{sT0}, vcc_lo, 0xff\nv_bfe_u32 v12, v8, 20, 5\nv_bfe_u32 v13, v8, 25, 5\nv_cmp_gt_u32 vcc, v13, v12\ns_and_b32 s{sT2}, vcc_lo, 0xff')
    A(f's_bcnt1_i32_b32 s{sT1}, s{sT0}\ns_cmp_eq_u32 s{sT1}, 4\ns_cselect_b32 s{sT0}, s{sT0}, 0xf0')
    A(f's_bcnt1_i32_b32 s{sT1}, s{sT2}\ns_cmp_eq_u32 s{sT1}, 4\ns_cselect_b32 s{sT2}, s{sT2}, 0xf0\ns_lshl_b32 s{sT2}, s{sT2}, 8\ns_or_b32 s{sNUMA}, s{sT0}, s{sT2}')
    A(f'v_cmp_eq_u32 vcc, 32, v10\ns_and_b32 s{sT0}, vcc_lo, 0xff\ns_mov_b32 s{sT1}, 0\ns_cmp_eq_u32 s{sT0}, 0xff\ns_cbranch_scc1 L_C5')
    A(f's_mov_b32 s{sT1}, 1\ns_mov_b32 s{sNUMA}, 0xf0f0')
    A('L_C5:')
    A(f'v_mov_b32 v8, s{sT1}\nv_mov_b32 v9, s{sNUMA}\nv_mov_b32 v12, {L_ROLE+16}\nds_write_b64 v12, v[8:9]')
    A('L_CP_SKIP:')
def census_apply(A,force_slow=False):
    A(f'v_mov_b32 v12, {L_ROLE+16}\nds_read_b64 v[8:9], v12\ns_waitcnt lgkmcnt(0)\nv_readfirstlane_b32 s{sT0}, v8\nv_readfirstlane_b32 s{sNUMA}, v9')
    if force_slow: A(f's_mov_b32 s{sT0}, 1\ns_mov_b32 s{sNUMA}, 0xf0f0')
    A(f's_cmp_eq_u32 s{sT0}, s{sMODE}\ns_cbranch_scc1 L_CAP')
    A(f's_mov_b32 s{sMODE}, 1\ns_lshr_b32 s{sXC}, s2, 5\ns_and_b32 s{sR}, s2, 31\ns_barrier\ns_branch L_WGT2')
    A('L_CAP:')
def bi_calc(A,dst,dreg,page):
    A(f's_lshr_b32 s72, s{sNUMA}, {8*page}\ns_and_b32 s72, s72, 0xff')
    A(f's_lshr_b32 s73, s72, s{dreg}\ns_and_b32 s73, s73, 1')
    A(f's_xor_b32 s74, s72, 0xff\ns_cmp_eq_u32 s73, 1\ns_cselect_b32 s74, s72, s74')
    A(f's_lshl_b32 s75, 1, s{dreg}\ns_sub_u32 s75, s75, 1\ns_and_b32 s74, s74, s75\ns_bcnt1_i32_b32 s74, s74')
    A(f's_lshl_b32 s{dst}, s74, 1\ns_or_b32 s{dst}, s{dst}, s73\ns_lshl_b32 s{dst}, s{dst}, 13')
```

```python
from g7_pro import *
F_MS=160
FIo=0xF000
F_IDX=192
def sync8(A,tag,val):
    A(f'v_mov_b32 v8, {val}\nds_write_b32 v3, v8 offset:{F_MS}\nv_mov_b32 v9, {L_FL+F_MS}')
    A(f'L_{tag}:')
    A(f'ds_read_b128 v[16:19], v9\nds_read_b128 v[20:23], v9 offset:16\ns_waitcnt lgkmcnt(0)\nv_min3_u32 v10, v16, v17, v18\nv_min3_u32 v10, v10, v19, v20\nv_min3_u32 v10, v10, v21, v22\nv_min_u32 v10, v10, v23\nv_cmp_gt_u32 vcc, {val}, v10\ns_cbranch_vccz L_{tag}K')
    spin(A,f'L_{tag}')
    A(f'L_{tag}K:')
def wave_max_u32(A,r,t):
    for sh in (8,4,2,1):
        A(f's_nop 1\nv_max_u32_dpp v{r}, v{r}, v{r} row_ror:{sh} row_mask:0xf bank_mask:0xf')
    for op in ('v_permlane16_swap_b32','v_permlane32_swap_b32'):
        A(f'v_mov_b32 v{t}, v{r}\ns_nop 1\n{op} v{r}, v{t}\ns_nop 1\nv_max_u32 v{r}, v{r}, v{t}')
def flagwait(A,tag,base,nlanes_mask,thr):
    A(f'v_lshlrev_b32 v8, 2, v0\nv_and_b32 v8, {nlanes_mask*4}, v8')
    A(f'L_{tag}:')
    A(f'buffer_load_dword v9, v8, {WS}, s{base} offen sc1\ns_waitcnt vmcnt(0)\nv_cmp_gt_u32 vcc, {thr}, v9\ns_cbranch_vccz L_{tag}K')
    A('s_sleep 2')
    spin(A,f'L_{tag}')
    A(f'L_{tag}K:')
def phase_b2(A,sI0,sI1,sNH,ptrs):
    w=sW
    A('s_waitcnt vmcnt(0)')
    A(f's_mov_b32 s{sT0}, {FLG+FGo}')
    b2_top2(A,sI0,sI1)
    A(f's_cmp_lg_u32 s{sWAVE}, 0\ns_cbranch_scc1 L_B2I')
    A(f's_lshl_b32 s{sT0}, s{sXC}, 4\ns_add_u32 s{sT0}, s{sT0}, s{sRL}\ns_lshl_b32 s{sT0}, s{sT0}, 2\ns_add_u32 s{sT0}, s{sT0}, {FLG+FIo}\ns_lshl_b32 s{sT1}, s{sI1}, 12\ns_or_b32 s{sT1}, s{sT1}, s{sI0}\ns_or_b32 s{sT1}, s{sT1}, 0x1000000')
    A(f's_mov_b64 exec, 1\nv_mov_b32 v8, s{sT1}\nv_mov_b32 v9, 0\nbuffer_store_dword v8, v9, {WS}, s{sT0} offen sc1\ns_mov_b64 exec, -1')
    A('L_B2I:')
    A(f's_lshl_b32 s{sT3}, s{sXC}, 4\ns_add_u32 s{sT3}, s{sT3}, s{sRL}\ns_cmp_ge_u32 s{sT3}, 112\ns_cbranch_scc1 L_B2END')
    for sI,d in ((sI0,sT0),(sI1,sT1)):
        A(f's_lshr_b32 s{d}, s{sI}, 4\ns_lshl_b32 s{d}, s{d}, 15\ns_and_b32 s{sT2}, s{sI}, 15\ns_lshl_b32 s{sT2}, s{sT2}, 4\ns_add_u32 s{d}, s{d}, s{sT2}')
    A(f'v_and_b32 v5, 1, v0\nv_cmp_eq_u32 vcc, 1, v5\nv_mov_b32 v5, s{sT0}\nv_mov_b32 v6, s{sT1}\nv_cndmask_b32 v5, v5, v6, vcc\nv_lshrrev_b32 v6, 4, v0\nv_lshlrev_b32 v6, 8, v6\nv_add_u32 v5, v5, v6')
    A(f's_lshl_b32 s{sT0}, s{w}, 13\ns_add_u32 s{sT0}, s{sT0}, {XF}\ns_add_u32 s{sT1}, s{sT0}, 4096')
    for t in range(8): A(f'buffer_load_dwordx4 {vr(136+4*t,4)}, v5, {WS}, s{sT0 if t<4 else sT1} offen offset:{1024*(t&3)}')
    A('v_lshrrev_b32 v5, 2, v0\nv_mul_u32_u24 v5, 7168, v5\nv_and_b32 v6, 3, v0\nv_lshlrev_b32 v6, 4, v6\nv_add_u32 v5, v5, v6')
    A(f'v_lshrrev_b32 v6, 4, v0\nv_lshlrev_b32 v6, 3, v6\nv_bfe_u32 v8, v0, 2, 2\nv_add_u32 v6, v6, v8\nv_lshlrev_b32 v6, 6, v6\nv_and_b32 v8, 3, v0\nv_lshlrev_b32 v8, 3, v8\nv_add_u32 v6, v6, v8\ns_lshl_b32 s{sT0}, s{w}, 14\ns_lshl_b32 s{sT1}, s{sNH}, 5\ns_add_u32 s{sT0}, s{sT0}, s{sT1}\ns_add_u32 s{sT0}, s{sT0}, {L_XB}\nv_add_u32 v6, s{sT0}, v6')
    for mi in range(2):
        sync8(A,f'MS{mi}a',1+2*mi)
        srd(A,sT,ptrs[mi],7340032)
        A(f's_mul_i32 s{sT0}, s{sWAVE}, {128*7168}\ns_lshl_b32 s{sT1}, s{sT3}, 6\ns_add_u32 s{sT0}, s{sT0}, s{sT1}\ns_lshl_b32 s{sT2}, s{sWAVE}, 13')
        for k in range(8):
            A(f's_add_u32 s{sT1}, s{sT0}, {k*16*7168}\ns_add_u32 m0, s{sT2}, {L_XB+k*1024}\ns_nop 0\nbuffer_load_dwordx4 v5, {sr(sT,4)}, s{sT1} offen nt lds')
        A('s_waitcnt vmcnt(0)')
        sync8(A,f'MS{mi}b',2+2*mi)
        acc=32+4*mi
        for t in range(8):
            b=16+4*(t&3)
            A(f'ds_read_b64_tr_b16 {vr(b,2)}, v6 offset:{t*2048}\nds_read_b64_tr_b16 {vr(b+2,2)}, v6 offset:{t*2048+256}\ns_waitcnt lgkmcnt(0)')
            A(f'{MF} {vr(acc,4)}, {vr(b,4)}, {vr(136+4*t,4)}, {"0" if t==0 else vr(acc,4)}')
    A.nop(8)
    A('ds_write_b128 v14, v[32:35]\nds_write_b128 v14, v[36:39] offset:1024\ns_waitcnt lgkmcnt(0)')
    sync8(A,'MSr',5)
    A(f's_cmp_lg_u32 s{w}, 0\ns_cbranch_scc1 L_B2END')
    for mi in range(2):
        for src in range(4): A(f'ds_read_b128 {vr(136+16*mi+4*src,4)}, v15 offset:{2048*src+1024*mi}')
    A('s_waitcnt lgkmcnt(0)')
    for mi in range(2):
        p=136+16*mi
        A(f'v_pk_add_f32 {vr(p,2)}, {vr(p,2)}, {vr(p+4,2)}\nv_pk_add_f32 {vr(p+2,2)}, {vr(p+2,2)}, {vr(p+6,2)}\nv_pk_add_f32 {vr(p+8,2)}, {vr(p+8,2)}, {vr(p+12,2)}\nv_pk_add_f32 {vr(p+10,2)}, {vr(p+10,2)}, {vr(p+14,2)}')
        A(f'v_pk_add_f32 {vr(p,2)}, {vr(p,2)}, {vr(p+8,2)}\nv_pk_add_f32 {vr(p+2,2)}, {vr(p+2,2)}, {vr(p+10,2)}')
        A(f'v_cvt_pk_bf16_f32 v{p+4}, v{p}, v{p+1}\nv_cvt_pk_bf16_f32 v{p+5}, v{p+2}, v{p+3}\nv_lshlrev_b32 v{p}, 16, v{p+4}\nv_and_b32 v{p+1}, 0xffff0000, v{p+4}\nv_lshlrev_b32 v{p+2}, 16, v{p+5}\nv_and_b32 v{p+3}, 0xffff0000, v{p+5}')
    for k in range(4):
        a=136+k
        A(f'v_mul_f32 v{144+k}, 0xbfb8aa3b, v{a}\nv_exp_f32 v{144+k}, v{144+k}\ns_nop 0\nv_add_f32 v{144+k}, 1.0, v{144+k}\nv_rcp_f32 v{144+k}, v{144+k}\ns_nop 0\nv_mul_f32 v{a}, v{a}, v{144+k}')
    A('v_cvt_pk_bf16_f32 v144, v136, v137\nv_cvt_pk_bf16_f32 v145, v138, v139\nv_lshlrev_b32 v136, 16, v144\nv_and_b32 v137, 0xffff0000, v144\nv_lshlrev_b32 v138, 16, v145\nv_and_b32 v139, 0xffff0000, v145')
    for k in range(4): A(f'v_mul_f32 v{136+k}, v{136+k}, v{152+k}')
    A('v_cvt_pk_bf16_f32 v144, v136, v137\nv_cvt_pk_bf16_f32 v145, v138, v139')
    A(f'v_and_b32 v5, 15, v0\nv_mul_u32_u24 v5, 7168, v5\nv_lshrrev_b32 v6, 4, v0\nv_lshlrev_b32 v6, 3, v6\nv_add_u32 v5, v5, v6\ns_lshl_b32 s{sT0}, s{sT3}, 6\ns_lshl_b32 s{sT1}, s{sNH}, 5\ns_add_u32 s{sT0}, s{sT0}, s{sT1}\ns_add_u32 s{sT0}, s{sT0}, {HB}')
    A(f's_mov_b32 exec_lo, 0x00030003\ns_mov_b32 exec_hi, 0x00030003\nbuffer_store_dwordx2 v[144:145], v5, {WS}, s{sT0} offen sc1\ns_waitcnt vmcnt(0)')
    A(f's_lshl_b32 s{sT0}, s{sT3}, 1\ns_add_u32 s{sT0}, s{sT0}, s{sNH}\ns_lshl_b32 s{sT0}, s{sT0}, 2\ns_add_u32 s{sT0}, s{sT0}, {FLG+FHo}\ns_mov_b64 exec, 1\nv_mov_b32 v8, 1\nv_mov_b32 v9, 0\nbuffer_store_dword v8, v9, {WS}, s{sT0} offen sc1\ns_mov_b64 exec, -1')
    A('L_B2END:')
def phase_b3(A,ptr):
    A('s_waitcnt vmcnt(0)')
    A(f's_mul_i32 s{sT0}, s{sRL}, 56\ns_add_u32 s{sT0}, s{sT0}, {FLG+FHo}')
    A('v_and_b32 v8, 15, v0\nv_min_u32 v8, 13, v8\nv_lshlrev_b32 v8, 2, v8')
    A('L_MH:')
    A(f'buffer_load_dword v9, v8, {WS}, s{sT0} offen sc1\ns_waitcnt vmcnt(0)\nv_cmp_eq_u32 vcc, 0, v9\ns_cbranch_vccz L_MHK')
    A('s_sleep 2')
    spin(A,'L_MH')
    A('L_MHK:')
    A(f'v_and_b32 v5, 1, v0\nv_mul_u32_u24 v5, 7168, v5\nv_lshrrev_b32 v6, 4, v0\nv_lshlrev_b32 v6, 4, v6\nv_add_u32 v5, v5, v6\ns_mul_i32 s{sT0}, s{sRL}, 448\ns_add_u32 s{sT0}, s{sT0}, {HB}')
    for t in range(7): A(f'buffer_load_dwordx4 {vr(136+4*t,4)}, v5, {WS}, s{sT0} offen offset:{64*t} sc1')
    sync8(A,'MS3a',7)
    srd(A,sT,ptr,7340032)
    A('v_lshrrev_b32 v5, 4, v0\nv_lshlrev_b32 v5, 11, v5\nv_and_b32 v6, 15, v0\nv_lshlrev_b32 v6, 4, v6\nv_add_u32 v5, v5, v6')
    A(f's_mul_i32 s{sT0}, s{sRL}, {224*2048}\ns_mul_i32 s{sT1}, s{sWAVE}, {28*2048}\ns_add_u32 s{sT0}, s{sT0}, s{sT1}\ns_lshl_b32 s{sT1}, s{sXC}, 8\ns_add_u32 s{sT0}, s{sT0}, s{sT1}\ns_mul_i32 s{sT2}, s{sWAVE}, 7168')
    for k in range(7):
        A(f's_add_u32 s{sT1}, s{sT0}, {k*4*2048}\ns_add_u32 m0, s{sT2}, {L_XB+k*1024}\ns_nop 0\nbuffer_load_dwordx4 v5, {sr(sT,4)}, s{sT1} offen nt lds')
    A('s_waitcnt vmcnt(0)')
    sync8(A,'MS3b',8)
    A(f'v_lshrrev_b32 v6, 4, v0\nv_lshlrev_b32 v6, 3, v6\nv_bfe_u32 v8, v0, 2, 2\nv_add_u32 v6, v6, v8\nv_lshlrev_b32 v6, 8, v6\nv_and_b32 v8, 3, v0\nv_lshlrev_b32 v8, 3, v8\nv_add_u32 v6, v6, v8\ns_lshl_b32 s{sT0}, s{sWAVE}, 5\ns_add_u32 s{sT0}, s{sT0}, {L_XB}\nv_add_u32 v6, s{sT0}, v6')
    for t in range(7):
        b=16+4*(t&3)
        A(f'ds_read_b64_tr_b16 {vr(b,2)}, v6 offset:{t*8192}\nds_read_b64_tr_b16 {vr(b+2,2)}, v6 offset:{t*8192+1024}\ns_waitcnt lgkmcnt(0)')
        A(f'{MF} v[32:35], {vr(b,4)}, {vr(136+4*t,4)}, {"0" if t==0 else "v[32:35]"}')
    A(f'v_and_b32 v5, 15, v0\nv_lshlrev_b32 v5, 9, v5\nv_lshrrev_b32 v6, 4, v0\nv_lshlrev_b32 v6, 4, v6\nv_add_u32 v5, v5, v6\ns_lshl_b32 s{sT0}, s{sXC}, 4\ns_add_u32 s{sT0}, s{sT0}, s{sRL}\ns_lshl_b32 s{sT2}, s{sT0}, 5\ns_lshl_b32 s{sT0}, s{sT0}, 10\ns_lshl_b32 s{sT1}, s{sWAVE}, 6\ns_add_u32 s{sT0}, s{sT0}, s{sT1}\ns_add_u32 s{sT0}, s{sT0}, {YP}')
    A(f's_mov_b32 exec_lo, 0x00030003\ns_mov_b32 exec_hi, 0x00030003\nbuffer_store_dwordx4 v[32:35], v5, {WS}, s{sT0} offen sc1\ns_waitcnt vmcnt(0)')
    A(f's_lshl_b32 s{sT1}, s{sWAVE}, 2\ns_add_u32 s{sT2}, s{sT2}, s{sT1}\ns_add_u32 s{sT2}, s{sT2}, {FLG+FYo}\ns_mov_b64 exec, 1\nv_mov_b32 v8, 1\nv_mov_b32 v9, 0\nbuffer_store_dword v8, v9, {WS}, s{sT2} offen sc1\ns_mov_b64 exec, -1')
    sync8(A,'MS3c',9)
def fixup(A,L):
    w=sW
    A('s_waitcnt vmcnt(0)')
    A(f's_lshl_b32 s{sT0}, s{sXC}, 4\ns_add_u32 s{sT0}, s{sT0}, s{sRL}\ns_lshl_b32 s{sT0}, s{sT0}, 2\ns_add_u32 s{sT0}, s{sT0}, {FLG+FIo}\nv_mov_b32 v8, 0')
    A('L_FX0:')
    A(f'buffer_load_dword v16, v8, {WS}, s{sT0} offen sc1\ns_waitcnt vmcnt(0)\nv_readfirstlane_b32 s74, v16\ns_cmp_lg_u32 s74, 0\ns_cbranch_scc1 L_FX0K')
    A('s_sleep 4')
    spin(A,'L_FX0')
    A('L_FX0K:')
    A('s_and_b32 s72, s74, 0xfff\ns_bfe_u32 s73, s74, 0xc000c')
    for k in range(2):
        sI=72+k
        A(f's_bfe_u32 s{sT0}, s{sI}, 0x30002\ns_cmp_lg_u32 s{sT0}, s{sXC}\ns_cbranch_scc1 L_FXE{k}')
        A(f's_lshr_b32 s{sT0}, s{sRL}, 1\ns_lshl_b32 s{sT1}, s{sT0}, 9\ns_and_b32 s{sT2}, s{sRL}, 1\ns_lshl_b32 s{sT2}, s{sT2}, 2\ns_add_u32 s{sT2}, s{sT2}, s{w}\ns_lshl_b32 s{sT3}, s{sT2}, 2\ns_add_u32 s{sT1}, s{sT1}, s{sT3}\ns_add_u32 s{sT1}, s{sT1}, {FLG+FYo}')
        A('v_and_b32 v8, 15, v0\nv_lshlrev_b32 v9, 5, v8')
        A(f'L_FY{k}:')
        A(f'buffer_load_dword v10, v9, {WS}, s{sT1} offen sc1\ns_waitcnt vmcnt(0)\nv_cmp_eq_u32 vcc, 0, v10\ns_cbranch_vccz L_FY{k}K')
        A('s_sleep 2')
        spin(A,f'L_FY{k}')
        A(f'L_FY{k}K:')
        A(f'v_lshrrev_b32 v9, 4, v0\nv_lshlrev_b32 v9, 10, v9\nv_lshlrev_b32 v10, 2, v8\nv_add_u32 v9, v9, v10\ns_lshl_b32 s{sT1}, s{sT0}, 14\ns_lshl_b32 s{sT3}, s{sT2}, 6\ns_add_u32 s{sT1}, s{sT1}, s{sT3}\ns_add_u32 s{sT1}, s{sT1}, {YP+512*k}')
        for m in range(4):
            A(f's_add_u32 s{sT3}, s{sT1}, {4096*m}\nbuffer_load_dword v{16+m}, v9, {WS}, s{sT3} offen sc1')
        A(f's_lshl_b32 s{sT1}, s{sI}, 11\ns_lshl_b32 s{sT3}, s{sRL}, 7\ns_add_u32 s{sT1}, s{sT1}, s{sT3}\ns_lshl_b32 s{sT3}, s{w}, 5\ns_add_u32 s{sT1}, s{sT1}, s{sT3}\nv_lshlrev_b32 v10, 1, v8\ns_add_u32 s{sT3}, s{sT1}, {AO}')
        A(f'buffer_load_ushort v20, v10, {sr(sX,4)}, s{sT1} offen\nbuffer_load_ushort v21, v10, {WS}, s{sT3} offen sc1')
        A(f's_lshl_b32 s{sT3}, s{sI}, 2\ns_add_u32 s{sT3}, s{sT3}, {GR}\nv_mov_b32 v11, 0\nbuffer_load_dword v22, v11, {WS}, s{sT3} offen sc1\ns_add_u32 s{sT3}, s{sT3}, 8192\nbuffer_load_dword v23, v11, {WS}, s{sT3} offen sc1\ns_waitcnt vmcnt(0)')
        A('v_add_f32 v16, v16, v17\nv_add_f32 v18, v18, v19\nv_add_f32 v16, v16, v18')
        for op in ('v_permlane16_swap_b32','v_permlane32_swap_b32'):
            A(f'v_mov_b32 v17, v16\ns_nop 1\n{op} v16, v17\ns_nop 1\nv_add_f32 v16, v16, v17')
        rb=lambda r: A(f'v_cvt_pk_bf16_f32 v{r}, v{r}, v{r}\nv_lshlrev_b32 v{r}, 16, v{r}')
        rb(16)
        A('v_mul_f32 v23, 0xbfb8aa3b, v23\nv_exp_f32 v23, v23\ns_nop 0\nv_add_f32 v23, 1.0, v23\nv_rcp_f32 v23, v23\ns_nop 0'); rb(23)
        A('v_mul_f32 v16, v16, v23'); rb(16)
        A('v_lshlrev_b32 v20, 16, v20\nv_lshlrev_b32 v21, 16, v21\nv_add_f32 v16, v16, v20'); rb(16)
        A('v_sub_f32 v17, 1.0, v22'); rb(17)
        A('v_mul_f32 v21, v22, v21'); rb(21)
        A('v_mul_f32 v16, v17, v16'); rb(16)
        A('v_add_f32 v16, v16, v21\nv_cvt_pk_bf16_f32 v16, v16, v16')
        A(f's_mov_b64 exec, 0xffff\nbuffer_store_short v16, v10, {sr(sOUT,4)}, s{sT1} offen\ns_mov_b64 exec, -1')
        A(f'L_FXE{k}:')

def b2_top2(A,sI0,sI1):
    A('v_lshlrev_b32 v8, 2, v0')
    A('L_T2F:')
    for blk in range(4): A(f'buffer_load_dword v{9+blk}, v8, {WS}, s{sT0} offen offset:{256*blk} sc1')
    A('s_waitcnt vmcnt(0)\nv_min3_u32 v9, v9, v10, v11\nv_min_u32 v9, v9, v12\nv_cmp_eq_u32 vcc, 0, v9\ns_cbranch_vccz L_T2K')
    spin(A,'L_T2F')
    A('L_T2K:')
    A(f's_mov_b32 s{sT0}, {GR+16384}\ns_mov_b32 s{sT1}, 0\nv_mov_b32 v8, 0\nv_mov_b32 v9, 0')
    A('L_T2L:')
    for k in range(4): A(f'buffer_load_dwordx4 {vr(16+4*k,4)}, v1, {WS}, s{sT0} offen offset:{1024*k} sc1')
    A('s_waitcnt vmcnt(0)')
    for k in range(16): A(f'v_med3_u32 v9, v8, v9, v{16+k}\nv_max_u32 v8, v8, v{16+k}')
    A(f's_add_u32 s{sT0}, s{sT0}, 4096\ns_add_u32 s{sT1}, s{sT1}, 1\ns_cmp_lt_u32 s{sT1}, 2\ns_cbranch_scc1 L_T2L')
    A('v_mov_b32 v10, v8')
    wave_max_u32(A,10,11)
    A('v_cmp_eq_u32 vcc, v8, v10\ns_nop 1\nv_cndmask_b32 v8, v8, v9, vcc')
    wave_max_u32(A,8,11)
    A(f'v_readfirstlane_b32 s{sI0}, v10\nv_readfirstlane_b32 s{sI1}, v8')
    A(f's_and_b32 s{sI0}, s{sI0}, 0xffff\ns_sub_u32 s{sI0}, 0xffff, s{sI0}\ns_and_b32 s{sI0}, s{sI0}, 2047\ns_and_b32 s{sI1}, s{sI1}, 0xffff\ns_sub_u32 s{sI1}, 0xffff, s{sI1}\ns_and_b32 s{sI1}, s{sI1}, 2047')
    A(f'v_mov_b32 v8, s{sI0}\nv_mov_b32 v9, s{sI1}\nv_mov_b32 v10, 1\nv_mov_b32 v11, 1\nv_mov_b32 v5, {L_FL+F_IDX}\nds_write_b128 v5, v[8:11]')
def b2_micro(A,sJ,sI0,sI1,L_MS,L_MA):
    c=sWAVE
    A(f's_lshl_b32 s{sT3}, s{sXC}, 4\ns_add_u32 s{sT3}, s{sT3}, s{sRL}')
    A(f's_cmp_lg_u32 s{sJ}, 0\ns_cbranch_scc1 L_M1')
    A(f's_mov_b32 s{sT0}, {FLG+FGo}')
    b2_top2(A,sI0,sI1)
    A('s_branch L_M2')
    A('L_M1:')
    A(f's_cmp_ge_u32 s{sT3}, 112\ns_cbranch_scc1 L_M9')
    for sI,d in ((sI0,sT0),(sI1,sT1)):
        A(f's_lshr_b32 s{d}, s{sI}, 4\ns_lshl_b32 s{d}, s{d}, 15\ns_and_b32 s{sT2}, s{sI}, 15\ns_lshl_b32 s{sT2}, s{sT2}, 4\ns_add_u32 s{d}, s{d}, s{sT2}')
    A(f'v_and_b32 v5, 1, v0\nv_cmp_eq_u32 vcc, 1, v5\nv_mov_b32 v5, s{sT0}\nv_mov_b32 v6, s{sT1}\nv_cndmask_b32 v5, v5, v6, vcc\nv_lshrrev_b32 v6, 4, v0\nv_lshl_add_u32 v5, v6, 8, v5')
    A(f's_sub_u32 s{sT2}, s{sJ}, 1\ns_and_b32 s{sT0}, s{sT2}, 3\ns_lshl_b32 s{sT1}, s{c}, 2\ns_add_u32 s{sT0}, s{sT0}, s{sT1}\ns_lshl_b32 s{sT0}, s{sT0}, 10\ns_add_u32 s{sT0}, s{sT0}, {XF}')
    A(f'buffer_load_dwordx4 v[16:19], v5, {WS}, s{sT0} offen')
    A(f'v_lshlrev_b32 v5, 3, v6\nv_bfe_u32 v8, v0, 2, 2\nv_add_u32 v5, v5, v8\nv_lshlrev_b32 v5, 6, v5\nv_and_b32 v8, 3, v0\nv_lshl_add_u32 v5, v8, 3, v5\ns_lshl_b32 s{sT0}, s{c}, 11\ns_add_u32 s{sT0}, s{sT0}, {L_MS}\nv_add_u32 v5, s{sT0}, v5')
    A(f'v_and_b32 v8, 1, v0\nv_lshl_add_u32 v8, v6, 1, v8\nv_lshlrev_b32 v8, 4, v8\ns_lshl_b32 s{sT0}, s{c}, 9\ns_lshr_b32 s{sT1}, s{sT2}, 2\ns_lshl_b32 s{sT1}, s{sT1}, 8\ns_add_u32 s{sT0}, s{sT0}, s{sT1}\ns_add_u32 s{sT0}, s{sT0}, {L_MA}\nv_add_u32 v8, s{sT0}, v8')
    for i in range(8): A(f'v_mov_b32 v{28+i}, 0')
    A(f's_and_b32 s{sT0}, s{sT2}, 3\ns_cmp_eq_u32 s{sT0}, 0\ns_cbranch_scc1 L_M1a')
    A('ds_read_b128 v[28:31], v8\nds_read_b128 v[32:35], v8 offset:128')
    A('L_M1a:')
    A('s_waitcnt vmcnt(0)')
    for tl in range(2):
        A(f'ds_read_b64_tr_b16 {vr(20+4*tl,2)}, v5 offset:{32*tl}\nds_read_b64_tr_b16 {vr(22+4*tl,2)}, v5 offset:{32*tl+256}')
    A('s_waitcnt lgkmcnt(0)')
    for tl in range(2): A(f'{MF} {vr(28+4*tl,4)}, {vr(20+4*tl,4)}, v[16:19], {vr(28+4*tl,4)}')
    A.nop(8)
    A('s_mov_b32 exec_lo, 0x00030003\ns_mov_b32 exec_hi, 0x00030003\nds_write_b128 v8, v[28:31]\nds_write_b128 v8, v[32:35] offset:128\ns_mov_b64 exec, -1\ns_waitcnt lgkmcnt(0)')
    A('L_M2:')
    A(f's_cmp_ge_u32 s{sT3}, 112\ns_cbranch_scc1 L_M9')
    A(f's_cmp_ge_u32 s{sJ}, 8\ns_cbranch_scc1 L_M9')
    A('v_lshrrev_b32 v5, 2, v0\nv_mul_u32_u24 v5, 7168, v5\nv_and_b32 v6, 3, v0\nv_lshl_add_u32 v5, v6, 4, v5')
    A(f's_and_b32 s{sT0}, s{sJ}, 3\ns_lshl_b32 s{sT1}, s{c}, 2\ns_add_u32 s{sT0}, s{sT0}, s{sT1}\ns_mul_i32 s{sT0}, s{sT0}, {32*7168}\ns_lshl_b32 s{sT1}, s{sT3}, 6\ns_add_u32 s{sT0}, s{sT0}, s{sT1}\ns_add_u32 s{sT1}, s{sT0}, {16*7168}\ns_lshl_b32 s{sT2}, s{c}, 11')
    A(f's_cmp_ge_u32 s{sJ}, 4\ns_cbranch_scc1 L_M3')
    srd(A,sT,50,7340032)
    A('s_branch L_M4\nL_M3:')
    srd(A,sT,52,7340032)
    A('L_M4:')
    A(f's_add_u32 m0, s{sT2}, {L_MS}\ns_nop 0\nbuffer_load_dwordx4 v5, {sr(sT,4)}, s{sT0} offen nt lds\ns_add_u32 m0, s{sT2}, {L_MS+1024}\ns_nop 0\nbuffer_load_dwordx4 v5, {sr(sT,4)}, s{sT1} offen nt lds')
    A('L_M9:')
def b2_final(A,L_MA):
    sync8(A,'MSf',6)
    A(f's_lshl_b32 s{sT3}, s{sXC}, 4\ns_add_u32 s{sT3}, s{sT3}, s{sRL}\ns_cmp_ge_u32 s{sT3}, 112\ns_cbranch_scc1 L_MF9\ns_cmp_lg_u32 s{sWAVE}, 0\ns_cbranch_scc1 L_MF9')
    A(f'v_and_b32 v5, 15, v0\nv_lshlrev_b32 v5, 4, v5\nv_add_u32 v5, {L_MA}, v5')
    for i in range(8): A(f'v_mov_b32 v{8+i}, 0')
    for src in range(8):
        A(f'ds_read_b128 v[16:19], v5 offset:{512*src}\nds_read_b128 v[20:23], v5 offset:{512*src+256}\ns_waitcnt lgkmcnt(0)')
        for k in range(4): A(f'v_pk_add_f32 {vr(8+2*k,2)}, {vr(8+2*k,2)}, {vr(16+2*k,2)}')
    for p in (8,12):
        A(f'v_cvt_pk_bf16_f32 v16, v{p}, v{p+1}\nv_cvt_pk_bf16_f32 v17, v{p+2}, v{p+3}\nv_lshlrev_b32 v{p}, 16, v16\nv_and_b32 v{p+1}, 0xffff0000, v16\nv_lshlrev_b32 v{p+2}, 16, v17\nv_and_b32 v{p+3}, 0xffff0000, v17')
    for k in range(4):
        a=8+k
        A(f'v_mul_f32 v{16+k}, 0xbfb8aa3b, v{a}\nv_exp_f32 v{16+k}, v{16+k}\ns_nop 0\nv_add_f32 v{16+k}, 1.0, v{16+k}\nv_rcp_f32 v{16+k}, v{16+k}\ns_nop 0\nv_mul_f32 v{a}, v{a}, v{16+k}')
    A('v_cvt_pk_bf16_f32 v16, v8, v9\nv_cvt_pk_bf16_f32 v17, v10, v11\nv_lshlrev_b32 v8, 16, v16\nv_and_b32 v9, 0xffff0000, v16\nv_lshlrev_b32 v10, 16, v17\nv_and_b32 v11, 0xffff0000, v17')
    for k in range(4): A(f'v_mul_f32 v{8+k}, v{8+k}, v{12+k}')
    A('v_cvt_pk_bf16_f32 v16, v8, v9\nv_cvt_pk_bf16_f32 v17, v10, v11')
    A(f'v_and_b32 v5, 1, v0\nv_mul_u32_u24 v5, 7168, v5\nv_bfe_u32 v6, v0, 1, 3\nv_lshl_add_u32 v5, v6, 3, v5\ns_lshl_b32 s{sT0}, s{sT3}, 6\ns_add_u32 s{sT0}, s{sT0}, {HB}')
    A(f's_mov_b64 exec, 0xffff\nbuffer_store_dwordx2 v[16:17], v5, {WS}, s{sT0} offen sc1\ns_waitcnt vmcnt(0)')
    A(f's_lshl_b32 s{sT0}, s{sT3}, 3\ns_add_u32 s{sT0}, s{sT0}, {FLG+FHo}\ns_mov_b64 exec, 1\nv_mov_b32 v8, 1\nv_mov_b32 v9, 1\nv_mov_b32 v5, 0\nbuffer_store_dwordx2 v[8:9], v5, {WS}, s{sT0} offen sc1\ns_mov_b64 exec, -1')
    A('L_MF9:')
```

```python
import sys
from g7_common import *
from g11_chain import gen_ca, gen_cb
from g11_bulk import *
from g11_pro import *
TIMD=DBGW+0x200000
NW=12
TRC=DBGW+0x400000
def gen(**kw):
    P=dict(DC=128,DV=128,DVR=192,DA=160,DB=512,DP=448,PCA=2,B2AT=12,B2ST=4,B3AT=54,wfl='nt',AHEAD=9,PBV=1,stamps=False,timing=False)
    P.update(kw)
    A=Asm(); A.ool=[]
    def rt(k,sreg=None,vt=(2,3)):
        if not P.get('trace'): return
        A(f's_memrealtime s[72:73]\ns_mul_i32 s74, s2, 12\ns_add_u32 s74, s74, s{sWAVE}\ns_lshl_b32 s74, s74, 9\ns_add_u32 s74, s74, {TRC}')
        if sreg is not None: A(f's_add_u32 s75, s{sreg}, {k}\ns_lshl_b32 s75, s75, 2\ns_add_u32 s74, s74, s75')
        else: A(f's_add_u32 s74, s74, {4*k}')
        A(f's_waitcnt lgkmcnt(0)\ns_mov_b64 exec, 1\nv_mov_b32 v{vt[0]}, s72\nv_mov_b32 v{vt[1]}, 0\nbuffer_store_dword v{vt[0]}, v{vt[1]}, {WS}, s74 offen\ns_mov_b64 exec, -1')
    P['rt']=rt
    prologue(A,rt)
    rt(1)
    gate_xf(A,rt)
    A('L_WGT2:')
    weights(A,P.get('wfl',''))
    rt(2)
    A('s_waitcnt vmcnt(0) lgkmcnt(0)\ns_barrier')
    census_poll(A)
    A('s_waitcnt lgkmcnt(0)\ns_barrier')
    rt(3)
    census_apply(A,P.get('force_slow'))
    if P.get('numaflip'): A(f's_xor_b32 s{sNUMA}, s{sNUMA}, 0xffff')
    weights2(A)
    A('s_barrier')
    gen_sel(A)
    A(f'v_mov_b32 v8, 0\nv_lshlrev_b32 v9, 2, v0\nds_write_b32 v9, v8 offset:{L_FL}\nds_write_b32 v9, v8 offset:{L_FL+256}\ns_waitcnt lgkmcnt(0)\ns_barrier')
    rt(4)
    if P.get('trace'): A(f'v_mov_b32 v2, s{sR}\nv_mov_b32 v3, 0\ns_add_u32 s74, s74, 4\ns_mov_b64 exec, 1\nbuffer_store_dword v2, v3, {WS}, s74 offen\ns_mov_b64 exec, -1')
    A(f's_cmp_ge_u32 s{sR}, 16\ns_cbranch_scc1 L_BULK\ns_cmp_ge_u32 s{sWAVE}, 8\ns_cbranch_scc1 L_CB')
    retry=[]
    def mk_stamp(tag,nst,vtmp):
        def stamp(i):
            if not P['timing']: return
            if i=='acc':
                if P['stamps']:
                    A(f's_cmp_lg_u32 s{sS}, {30 if tag=="A" else 31}\ns_cbranch_scc1 L_NA{tag}')
                    A('s_waitcnt lgkmcnt(0)')
                    A(f's_lshl_b32 s{sT0}, s{sXC}, 4\ns_add_u32 s{sT0}, s{sT0}, s{sR}\ns_lshl_b32 s{sT0}, s{sT0}, 4\ns_add_u32 s{sT0}, s{sT0}, s{sWAVE}\ns_lshl_b32 s{sT0}, s{sT0}, 6\ns_add_u32 s{sT0}, s{sT0}, {TIMD+0x80000}')
                    A(f's_mov_b64 exec, 1\nv_mov_b32 v{vtmp+16}, 0')
                    for k in range(14): A(f'v_mov_b32 v{vtmp+k}, s{32+2*k}')
                    for k in range(4): A(f'buffer_store_dwordx4 {vr(vtmp+4*k,4)}, v{vtmp+16}, {WS}, s{sT0} offen offset:{16*k}')
                    A('s_mov_b64 exec, -1')
                    A(f'L_NA{tag}:')
                A(f's_cmp_lg_u32 s{sS}, 1\ns_cbranch_scc1 L_NB{tag}\ns_memtime s[60:61]\ns_waitcnt lgkmcnt(0)\nL_NB{tag}:')
                A(f's_cmp_lg_u32 s{sS}, 61\ns_cbranch_scc1 L_NC{tag}\ns_memtime s[62:63]\ns_waitcnt lgkmcnt(0)\nL_NC{tag}:')
            elif i=='dump':
                A('s_waitcnt vmcnt(0) lgkmcnt(0)\ns_sub_u32 s62, s62, s60')
                A(f's_lshl_b32 s{sT0}, s{sXC}, 4\ns_add_u32 s{sT0}, s{sT0}, s{sR}\ns_lshl_b32 s{sT0}, s{sT0}, 4\ns_add_u32 s{sT0}, s{sT0}, s{sWAVE}\ns_lshl_b32 s{sT0}, s{sT0}, 6\ns_add_u32 s{sT0}, s{sT0}, {TIMD}')
                A(f's_mov_b64 exec, 1\nv_mov_b32 v{vtmp}, s62\nv_mov_b32 v{vtmp+1}, s{sSPG}\nv_mov_b32 v{vtmp+2}, s{sMODE}\nv_mov_b32 v{vtmp+3}, s{sNUMA}\nv_mov_b32 v0, 0')
                A(f'buffer_store_dwordx4 {vr(vtmp,4)}, v0, {WS}, s{sT0} offen')
                A('s_mov_b64 exec, -1')
            elif P['stamps']: A(f's_memtime s[{32+2*i}:{33+2*i}]')
        return stamp
    gen_ca(A,P,retry,mk_stamp('A',5,16))
    gen_cb(A,P,retry,mk_stamp('B',7,80))
    A('L_BULK:')
    if P.get('nobulk'): A('s_endpgm')
    A(f's_cmp_ge_u32 s{sWAVE}, 8\ns_cbranch_scc1 L_BV')
    gen_xp(A,P)
    gen_bv(A,P)
    for (lab,loads,back,inc) in retry:
        A(f'{lab}:')
        A(f's_waitcnt vmcnt(0)\ns_add_u32 s{sSPG}, s{sSPG}, {inc}\ns_add_u32 s{sSPIN}, s{sSPIN}, 1\ns_cmp_ge_u32 s{sSPIN}, {SPIN}\ns_cbranch_scc1 L_END')
        for l in loads: l()
        A(f's_branch {back}')
    for (l1,ins,l2) in A.ool:
        A(f'{l1}:')
        for i in ins: A(i)
        A(f's_branch {l2}')
    A('L_END:\ns_endpgm')
    A.lines.append(f'.set CODE_BYTES, L_END-{KNAME}-256')
    A.lines += ['.section .rodata,"a"','.p2align 6',f'.amdhsa_kernel {KNAME}','  .amdhsa_next_free_vgpr 168','  .amdhsa_next_free_sgpr 102','  .amdhsa_accum_offset 168','  .amdhsa_group_segment_fixed_size 0','  .amdhsa_kernarg_size 128','  .amdhsa_user_sgpr_count 2','  .amdhsa_user_sgpr_kernarg_segment_ptr 1','  .amdhsa_system_sgpr_workgroup_id_x 1','.end_amdhsa_kernel']
    return A.text()
if __name__=='__main__':
    open('k11.s','w').write(gen())
```
